```python
import torch

def _softmax(x, axis=-1):
    return torch.softmax(x, dim=axis)
def _gelu(x):
    return torch.nn.functional.gelu(x, approximate="tanh")
def _silu(x):
    return torch.nn.functional.silu(x)
def _sigmoid(x):
    return torch.sigmoid(x)
def _layernorm(x, axis=-1, eps=1e-5):
    m = x.mean(dim=axis, keepdim=True)
    v = x.var(dim=axis, keepdim=True, unbiased=False)
    return (x - m) / torch.sqrt(v + eps)
def _scatter_add(tgt, idx, src, axis=0):
    return tgt.clone().index_add_(axis, idx, src)
def _segment_sum(src, seg, n):
    out = torch.zeros((n,) + src.shape[1:], dtype=src.dtype)
    return out.index_add_(0, seg, src)
def _pad(x, pw):
    flat = tuple(v for pair in reversed(pw) for v in pair)
    return torch.nn.functional.pad(x, flat)

kernel_name = 'gated_mix__ssm_conv_s4__geglu_ffn__prompt'

def setup_inputs():

    _w = (lambda a: (lambda t: t.to(torch.bfloat16) if t.is_floating_point() else t)(torch.as_tensor(a)))
    def _A_setup():
        B, L, D, N = 1, 2048, 512, 128
        A_re = -(lambda _x: torch.exp(torch.as_tensor(_x)))((lambda *s: torch.randn(*s, dtype=torch.bfloat16) * 6.4)(D, N))
        A_im = torch.pi * (lambda *s: torch.randn(*s, dtype=torch.bfloat16) * 0.05)(D, N)
        B_re = (lambda *s: torch.randn(*s, dtype=torch.bfloat16) * 0.1)(D, N)
        B_im = (lambda *s: torch.randn(*s, dtype=torch.bfloat16) * 0.1)(D, N)
        C_re = (lambda *s: torch.randn(*s, dtype=torch.bfloat16) * 0.1)(D, N)
        C_im = (lambda *s: torch.randn(*s, dtype=torch.bfloat16) * 0.1)(D, N)
        log_dt = (lambda *s: torch.randn(*s, dtype=torch.bfloat16) * 0.05)(D) * 0.5 - 4.0
        Dskip = (lambda *s: torch.randn(*s, dtype=torch.bfloat16) * 0.05)(D)
        return {
            "u": _w((lambda *s: torch.randn(*s, dtype=torch.bfloat16) * 0.05)(B, L, D)),
            "A_re": _w(A_re),
            "A_im": _w(A_im),
            "B_re": _w(B_re),
            "B_im": _w(B_im),
            "C_re": _w(C_re),
            "C_im": _w(C_im),
            "log_dt": _w(log_dt),
            "Dskip": _w(Dskip),
        }
    _A_in = _A_setup()

    def _B_setup():
        B, S, D, F = 1, 2048, 512, 1376
        return {
            "x": _w((lambda *s: torch.randn(*s, dtype=torch.bfloat16) * 0.05)(B, S, D)),
            "w_gate": _w((lambda *s: torch.randn(*s, dtype=torch.bfloat16) * 0.05)(D, F)),
            "w_up": _w((lambda *s: torch.randn(*s, dtype=torch.bfloat16) * 0.05)(D, F)),
            "w_down": _w((lambda *s: torch.randn(*s, dtype=torch.bfloat16) * 0.05)(F, D)),
        }
    _B_in = _B_setup()

    return {
        "A_u": _A_in["u"],
        "A_A_re": _A_in["A_re"],
        "A_A_im": _A_in["A_im"],
        "A_B_re": _A_in["B_re"],
        "A_B_im": _A_in["B_im"],
        "A_C_re": _A_in["C_re"],
        "A_C_im": _A_in["C_im"],
        "A_log_dt": _A_in["log_dt"],
        "A_Dskip": _A_in["Dskip"],
        "B_x": _B_in["x"],
        "B_w_gate": _B_in["w_gate"],
        "B_w_up": _B_in["w_up"],
        "B_w_down": _B_in["w_down"],
        "gate_w": _w((lambda *s: torch.randn(*s, dtype=torch.bfloat16) * 0.05)(512) * 16.0),
    }

def reference(A_u, A_A_re, A_A_im, A_B_re, A_B_im, A_C_re, A_C_im, A_log_dt, A_Dskip, B_x, B_w_gate, B_w_up, B_w_down, gate_w):
    def _A_ref(u, A_re, A_im, B_re, B_im, C_re, C_im, log_dt, Dskip):
        Bsz, L, D = u.shape
        dt = torch.exp(log_dt)[:, None]
        A = A_re + 1j * A_im
        Bc = B_re + 1j * B_im
        Cc = C_re + 1j * C_im
        logdA = dt * A
        dB = dt * Bc
        l = (lambda x, dt: x.to(dt))(torch.arange(L), A_re.dtype)
        P = torch.exp(logdA[:, :, None] * l[None, None, :])
        K = torch.einsum("dn,dnl,dn->dl", Cc, P, dB).real
        L2 = 2 * L
        Kp = _pad(K, ((0, 0), (0, L)))
        up = (lambda x, *d: x.permute(*d))(u, 0, 2, 1)
        up = _pad(up, ((0, 0), (0, 0), (0, L)))
        Kf = (lambda x, axes=(-2,-1): torch.fft.rfft2(x.float(), dim=axes))(Kp[:, None, :], axes=(-2, -1))
        Uf = (lambda x, axes=(-2,-1): torch.fft.rfft2(x.float(), dim=axes))(up[:, :, None, :], axes=(-2, -1))
        Yf = Uf * Kf[None, :, :, :]
        y = (lambda x, s, axes=(-2,-1): torch.fft.irfft2(x, s=s, dim=axes).to(torch.bfloat16))(Yf, (1, L2), axes=(-2, -1))[:, :, 0, :L]
        y = (lambda x, *d: x.permute(*d))(y, 0, 2, 1) + u * Dskip[None, None, :]
        return y

    def _B_ref(x, w_gate, w_up, w_down):
        return (_gelu(x @ w_gate) * (x @ w_up)) @ w_down

    x = A_u
    g = _sigmoid((x * gate_w).sum(-1, keepdims=True))
    a = _A_ref(x, A_A_re, A_A_im, A_B_re, A_B_im, A_C_re, A_C_im, A_log_dt, A_Dskip)
    b = _B_ref(x, B_w_gate, B_w_up, B_w_down)
    return g * a + (1 - g) * b
```

```python
import re
TRANS = ("v_exp_f32","v_log_f32","v_rcp_f32","v_rsq_f32","v_sqrt_f32","v_sin_f32","v_cos_f32")
def regs(tok):
    tok = tok.strip()
    tok = re.sub(r"^-|^abs\(|\)$|^\||\|$", "", tok)
    m = re.fullmatch(r"([vsa])(\d+)", tok)
    if m: return {(m.group(1), int(m.group(2)))}
    m = re.fullmatch(r"([vsa])\[(\d+):(\d+)\]", tok)
    if m: return {(m.group(1), i) for i in range(int(m.group(2)), int(m.group(3))+1)}
    if tok in ("vcc",): return {("s", 106), ("s", 107)}
    if tok == "m0": return {("m0", 0)}
    if tok == "exec": return {("exec", 0)}
    return set()
class Ins:
    def __init__(s, text):
        s.text = text
        t = text.split(";")[0].strip()
        p = t.split(None, 1)
        s.op = p[0]; rest = p[1] if len(p) > 1 else ""
        ops = [o.strip() for o in re.split(r",(?![^\[]*\])", rest)] if rest else []
        mods = ""
        if ops:
            q = ops[-1].split(None, 1)
            ops[-1] = q[0]; mods = q[1] if len(q) > 1 else ""
        s.ops = ops; s.mods = mods
        op = s.op
        s.mfma = op.startswith("v_mfma"); s.valu = op.startswith("v_") and not s.mfma
        s.trans = any(op.startswith(x) for x in TRANS)
        s.dpp = "_dpp" in op or "row_" in mods or "quad_perm" in mods
        s.vmem = op.startswith(("buffer_", "global_")); s.ds = op.startswith("ds_")
        s.salu = op.startswith("s_")
        s.w = set(); s.r = set(); s.states = 1
        R = [regs(o) for o in ops]
        if op == "s_nop": s.states = int(ops[0], 0) + 1
        elif s.mfma:
            s.w = R[0]; s.A = R[1]; s.B = R[2]; s.C = R[3]; s.r = R[1] | R[2] | R[3]
            s.sgemm = op.endswith("_f32") and ("x4_f32" in op or "x2_f32" in op)
            s.passes = 8 if ("32x32x16" in op or "16x16x4_f32" in op) else (16 if "32x32x2_f32" in op else 4)
        elif s.valu:
            s.w = set(R[0]);
            for x in R[1:]: s.r |= x
            if "fmac" in op or "permlane" in op or s.dpp or "writelane" in op: s.r |= R[0]
            if "permlane" in op and "swap" in op: s.w |= R[1]
            if "_co_" in op: s.w |= R[1]
            if op.startswith("v_cndmask") and len(ops) == 3: s.r |= regs("vcc")
        elif s.vmem:
            s.lds = " lds" in (" " + mods)
            if "load" in op and not s.lds:
                s.w = R[0]
                for x in R[1:]: s.r |= x
            else:
                for x in R: s.r |= x
                if "atomic" in op and "sc0" in mods: s.w = R[0]
            s.wide_store = ("store" in op) and ("x4" in op or "x3" in op)
            if s.wide_store: s.data = R[0] if op.startswith("buffer_") else R[1]
        elif s.ds:
            if "read" in op or "permute" in op or "swizzle" in op:
                s.w = R[0]
                for x in R[1:]: s.r |= x
            else:
                for x in R: s.r |= x
        elif s.salu and R and not op.startswith(("s_cmp", "s_cbranch", "s_branch", "s_waitcnt", "s_barrier", "s_sleep", "s_setprio")):
            s.w = set(R[0])
            for x in R[1:]: s.r |= x
            if "saveexec" in op: s.w |= {("exec", 0)}
def need(p, c):
    n = 0
    V = lambda S: {x for x in S if x[0] in "va"}
    Sg = lambda S: {x for x in S if x[0] == "s"}
    if p.valu:
        pw = V(p.w)
        if c.mfma and pw & c.r: n = max(n, 2)
        if c.valu and pw & c.r:
            if p.trans and not c.trans: n = max(n, 1)
            if c.dpp or "permlane" in c.op: n = max(n, 2)
            if "readlane" in c.op or "readfirstlane" in c.op: n = max(n, 1)
            if "op_sel" in p.mods and "v_pk" not in p.op or "sdwa" in p.op: n = max(n, 1)
        sw = Sg(p.w)
        if sw & c.r:
            if c.valu: n = max(n, 4 if ("readlane" in c.op or "writelane" in c.op) else 2)
            if c.vmem: n = max(n, 5)
            if c.salu: n = max(n, 1)
    if p.mfma:
        big = {4: 8, 8: 12, 16: 20}[p.passes] if not p.sgemm else {4: 6, 8: 10, 16: 18}[p.passes]
        if c.mfma:
            if p.w & (c.A | c.B): n = max(n, big)
            if p.w & c.C and not (p.w == c.C and p.passes == c.passes and p.sgemm == c.sgemm): n = max(n, big - 2)
        elif (c.valu or c.vmem or c.ds) and (p.w & (c.r | c.w)): n = max(n, big)
        if c.valu and not p.sgemm and (p.C & c.w): n = max(n, p.passes - 1)
    if p.salu and ("m0", 0) in p.w and c.vmem and getattr(c, "lds", False): n = max(n, 1)
    if p.vmem and getattr(p, "wide_store", False) and (p.data & c.w): n = max(n, 2 if c.valu else 1)
    return n
class Asm:
    def __init__(s): s.lines = []; s.hist = []; s.marks = {}
    def raw(s, t): s.lines.append(t)
    def label(s, name):
        s.lines.append(name + ":"); s.marks[name] = len(s.hist)
    def _pad(s, ins, hist):
        d = 0; req = 0
        for p in reversed(hist[-24:]):
            req = max(req, need(p, ins) - d); d += p.states
            if d >= 20: break
        return req
    def __call__(s, text):
        for t in text.strip().split("\n"):
            t = t.strip()
            if not t or t.startswith(";"): continue
            if t.endswith(":"): s.label(t[:-1]); continue
            ins = Ins(t)
            req = s._pad(ins, s.hist)
            if req > 0:
                n = Ins(f"s_nop {req-1}"); s.hist.append(n); s.lines.append("    " + n.text)
            s.hist.append(ins); s.lines.append("    " + t)
            if ins.op.startswith(("s_cbranch", "s_branch")) and ins.ops[0] in s.marks:
                h = list(s.hist)
                for c in s.hist[s.marks[ins.ops[0]]:][:24]:
                    assert s._pad(c, h) <= 0, f"back-edge hazard at {c.text}"
                    h.append(c)
    def fence(s, n=16):
        s(f"s_nop {n-1}")
    def text(s): return "\n".join(s.lines) + "\n"
```

```python
import sys, struct
from asmlib import Asm
def f2u(x): return struct.unpack("<I", struct.pack("<f", x))[0]
KB = 88
H_OFF = 0; WDF = 64*KB*1024; UT = WDF + 16*KB*1024; KR = UT + 0x200000; AT = KR + 0x200000; G_OFF = AT + 0x200000
WS_SZ = G_OFF + 0x2000
DPP = "row_mask:0xf bank_mask:0xf"
LOG2E = 1.4426950408889634
OPT = dict(merge=True, depth=8, stamps=False)

def srd(a, d, b, n):
    a(f"s_mov_b32 s{d}, s{b}\ns_mov_b32 s{d+1}, s{b+1}\ns_mov_b32 s{d+2}, {n:#x}\ns_mov_b32 s{d+3}, 0x00020000")

def interleave(main, fill, every, start=0):
    out = []; fi = 0
    for i, m in enumerate(main):
        out.append(m)
        if i >= start and (i - start) % every == every - 1 and fi < len(fill): out.append(fill[fi]); fi += 1
    out += fill[fi:]
    return out

def prep(a):
    a("""
    s_load_dwordx16 s[16:31], s[0:1], 0
    s_load_dwordx4 s[32:35], s[0:1], 96
    s_load_dwordx2 s[36:37], s[0:1], 128
    v_lshrrev_b32 v1, 6, v0
    v_and_b32 v2, 63, v0
    v_readfirstlane_b32 s3, v1
    s_lshl_b32 s4, s2, 9
    v_lshl_add_u32 v3, v0, 1, s4
    s_lshr_b32 s5, s3, 1
    s_lshl_b32 s6, s2, 1
    s_add_u32 s6, s6, s5
    s_lshl_b32 s7, s6, 1
    v_mov_b32 v4, s7
    v_and_b32 v5, 31, v2
    v_lshrrev_b32 v6, 5, v2
    s_lshr_b32 s8, s2, 3
    s_and_b32 s9, s2, 7
    s_lshl_b32 s10, s8, 6
    s_lshl_b32 s11, s3, 4
    s_add_u32 s10, s10, s11
    s_lshl_b32 s11, s10, 10
    s_lshl_b32 s12, s9, 7
    s_add_u32 s11, s11, s12
    s_add_u32 s11, s11, 4096
    v_lshlrev_b32 v7, 13, v6
    v_lshl_add_u32 v7, v5, 2, v7
    v_add_u32 v7, s11, v7
    s_lshl_b32 s13, s2, 2
    s_add_u32 s13, s13, s3
    s_lshr_b32 s14, s13, 3
    s_and_b32 s15, s13, 7
    s_lshl_b32 s40, s14, 14
    s_lshl_b32 s41, s15, 7
    s_add_u32 s40, s40, s41
    v_lshlrev_b32 v8, 12, v6
    v_lshl_add_u32 v8, v5, 2, v8
    v_add_u32 v8, s40, v8
    v_add_u32 v9, 0x2000, v8
    s_lshl_b32 s42, s13, 11
    v_lshlrev_b32 v10, 4, v2
    v_add_u32 v11, s42, v10
    s_waitcnt lgkmcnt(0)
    """)
    srd(a, 44, 32, 1376*1024)
    srd(a, 48, 36, WS_SZ)
    for i in range(6): a(f"global_load_ushort v{16+i}, v3, s[{18+2*i}:{19+2*i}]")
    a("global_load_ushort v22, v4, s[30:31]")
    for i in range(8): a(f"global_load_dword v{24+i}, v7, s[16:17] offset:{(i-4)*1024}")
    for j in range(8): a(f"buffer_load_dword v{32+j}, v{8+(j>>2)}, s[44:47], 0 offen offset:{(j&3)*1024}")
    a("""
    global_load_dwordx4 v[40:43], v11, s[16:17]
    global_load_dwordx4 v[44:47], v11, s[16:17] offset:1024
    global_load_dwordx4 v[48:51], v10, s[34:35]
    """)
    a("""
    v_and_b32 v12, 15, v2
    v_and_b32 v13, 7, v12
    v_lshrrev_b32 v14, 3, v12
    v_lshl_add_u32 v60, v14, 7, v13
    v_lshrrev_b32 v14, 2, v12
    v_lshlrev_b32 v14, 7, v14
    v_and_b32 v15, 3, v12
    v_lshl_add_u32 v14, v15, 1, v14
    v_add_u32 v14, 0x100, v14
    v_lshrrev_b32 v15, 1, v13
    v_lshlrev_b32 v15, 7, v15
    v_and_b32 v61, 1, v12
    v_lshl_add_u32 v15, v61, 2, v15
    v_add_u32 v15, 0x200, v15
    v_cmp_gt_u32 vcc, 8, v12
    v_cndmask_b32 v61, v15, v14, vcc
    v_min_u32 v62, 8, v12
    v_lshlrev_b32 v62, 7, v62
    v_add_u32 v62, 0x400, v62
    v_lshlrev_b32 v63, 3, v12
    v_cvt_f32_u32 v64, v60
    v_cvt_f32_u32 v65, v61
    v_cvt_f32_u32 v66, v62
    v_cvt_f32_u32 v67, v63
    s_mul_i32 s40, s3, 8704
    v_lshrrev_b32 v13, 4, v2
    v_lshlrev_b32 v13, 7, v13
    v_add_u32 v13, s40, v13
    v_lshl_add_u32 v60, v60, 2, v13
    v_lshl_add_u32 v61, v61, 2, v13
    v_lshl_add_u32 v62, v62, 2, v13
    s_mov_b32 s52, 0x05040100
    s_mov_b32 s53, 0x07060302
    s_mov_b32 s54, 0xffff0000
    """)
    for r in list(range(68, 80)) + list(range(100, 114)): a(f"v_mov_b32 v{r}, 0")
    a(f"""
    s_waitcnt vmcnt(19)
    v_lshlrev_b32 v22, 16, v22
    v_mul_f32 v22, {f2u(LOG2E):#x}, v22
    v_exp_f32 v22, v22
    """)
    for i in range(6): a(f"v_lshlrev_b32 v{16+i}, 16, v{16+i}")
    a(f"""
    v_cvt_pk_bf16_f32 v22, v22, v22
    v_lshlrev_b32 v22, 16, v22
    v_mul_f32 v16, v16, v22
    v_mul_f32 v17, v17, v22
    v_mul_f32 v18, v18, v22
    v_mul_f32 v19, v19, v22
    v_mul_f32 v80, {f2u(LOG2E):#x}, v16
    v_mul_f32 v81, 0.15915494, v17
    v_mul_f32 v82, v20, v18
    v_fma_f32 v82, -v21, v19, v82
    v_mul_f32 v84, v20, v19
    v_fma_f32 v84, v21, v18, v84
    v_sub_f32 v83, 0, v82
    v_sub_f32 v84, 0, v84
    """)
    a("s_waitcnt vmcnt(0)")
    for e, sel in ((0, 52), (1, 53)):
        for i in range(4): a(f"v_perm_b32 v{52+4*e+i}, v{25+2*i}, v{24+2*i}, s{sel}")
    a(f"""
    s_lshl_b32 s40, s9, 18
    s_lshl_b32 s41, s10, 1
    s_add_u32 s40, s40, s41
    s_add_u32 s40, s40, {UT}
    v_lshlrev_b32 v7, 13, v5
    v_lshl_add_u32 v7, v6, 4, v7
    v_add_u32 v14, 0x1000, v7
    buffer_store_dwordx4 v[52:55], v7, s[48:51], s40 offen
    buffer_store_dwordx4 v[56:59], v14, s[48:51], s40 offen
    s_cmp_ge_u32 s13, {KB*8}
    s_cbranch_scc1 Lp_nowd
    """)
    for e, sel in ((0, 52), (1, 53)):
        for i in range(4): a(f"v_perm_b32 v{24+4*e+i}, v{33+2*i}, v{32+2*i}, s{sel}")
    a(f"""
    s_mul_i32 s40, s15, {2*KB}
    s_add_u32 s40, s40, s14
    s_lshl_b32 s40, s40, 10
    s_add_u32 s40, s40, {WDF}
    v_lshrrev_b32 v8, 4, v5
    v_mul_u32_u24 v8, {KB*1024}, v8
    v_lshl_add_u32 v8, v12, 5, v8
    v_lshl_add_u32 v8, v6, 9, v8
    buffer_store_dwordx4 v[24:27], v8, s[48:51], s40 offen
    buffer_store_dwordx4 v[28:31], v8, s[48:51], s40 offen offset:16
Lp_nowd:
    s_nop 1
    """)
    a("v_mov_b32 v32, 0\nv_mov_b32 v33, 0")
    for i in range(4):
        a(f"v_lshlrev_b32 v34, 16, v{48+i}\nv_and_b32 v35, s54, v{48+i}")
        for rr in range(2):
            x = 40 + 4*rr + i
            a(f"""
            v_lshlrev_b32 v36, 16, v{x}
            v_and_b32 v37, s54, v{x}
            v_mul_f32 v36, v36, v34
            v_mul_f32 v37, v37, v35
            v_cvt_pk_bf16_f32 v36, v36, v37
            v_and_b32 v37, s54, v36
            v_lshlrev_b32 v36, 16, v36
            v_add_f32 v{32+rr}, v{32+rr}, v37
            v_add_f32 v{32+rr}, v{32+rr}, v36
            """)
    for sh in (8, 4, 2, 1):
        for rr in range(2): a(f"v_add_f32_dpp v{32+rr}, v{32+rr}, v{32+rr} row_ror:{sh} {DPP}")
    for rr in range(2):
        for q in range(4): a(f"v_readlane_b32 s{56+4*rr+q}, v{32+rr}, {16*q}")
    for rr in range(2):
        a(f"v_mov_b32 v{32+rr}, s{56+4*rr}")
        for q in range(1, 4): a(f"v_add_f32 v{32+rr}, s{56+4*rr+q}, v{32+rr}")
    a(f"""
    v_cmp_eq_u32 vcc, 0, v2
    v_cndmask_b32 v32, v33, v32, vcc
    v_cvt_pk_bf16_f32 v32, v32, v32
    v_lshlrev_b32 v32, 16, v32
    v_mul_f32 v32, {f2u(-LOG2E):#x}, v32
    v_exp_f32 v32, v32
    v_add_f32 v32, 1.0, v32
    v_rcp_f32 v32, v32
    v_cvt_pk_bf16_f32 v32, v32, v32
    v_lshlrev_b32 v32, 16, v32
    s_lshl_b32 s40, s13, 3
    s_add_u32 s40, s40, {G_OFF}
    v_lshlrev_b32 v33, 2, v2
    s_mov_b64 exec, 3
    buffer_store_dword v32, v33, s[48:51], s40 offen
    s_mov_b64 exec, -1
    """)
    def valu(b, i):
        L = []
        bc = f"row_newbcast:{i} {DPP}"
        for k in range(4): L.append(f"v_mul_f32_dpp v{b+4+k}, v81, v{64+k} {bc}")
        for k in range(4): L.append(f"v_mul_f32_dpp v{b+k}, v80, v{64+k} {bc}")
        for k in range(4): L.append(f"v_fract_f32 v{b+4+k}, v{b+4+k}")
        for k in (3, 0, 1, 2):
            L.append(f"v_exp_f32 v{b+k}, v{b+k}")
            L.append(f"v_cos_f32 v{b+8+k}, v{b+4+k}")
            L.append(f"v_sin_f32 v{b+4+k}, v{b+4+k}")
        for k in (3, 0, 1, 2):
            L.append(f"v_mul_f32 v{b+8+k}, v{b+k}, v{b+8+k}")
            L.append(f"v_mul_f32 v{b+4+k}, v{b+k}, v{b+4+k}")
        L.append(f"v_mul_f32_dpp v{b+12}, v82, v{b+11} {bc}")
        L.append(f"v_mul_f32_dpp v{b+13}, v83, v{b+7} {bc}")
        L.append(f"v_fmac_f32_dpp v{b+12}, v84, v{b+7} {bc}")
        L.append(f"v_fmac_f32_dpp v{b+13}, v84, v{b+11} {bc}")
        return L
    def mf(b):
        L = []
        for t in range(3): L.append(f"v_mfma_f32_16x16x4_f32 v[{68+4*t}:{71+4*t}], v{b+12}, v{b+8+t}, v[{68+4*t}:{71+4*t}]")
        for t in range(3): L.append(f"v_mfma_f32_16x16x4_f32 v[{68+4*t}:{71+4*t}], v{b+13}, v{b+4+t}, v[{68+4*t}:{71+4*t}]")
        return L
    a("s_mov_b32 s40, 4\nLp_loop:")
    for i in range(4):
        cur = 86 if i % 2 == 0 else 100; prev = 186 - cur
        for t in interleave(valu(cur, i), mf(prev), 5, 1): a(t)
    for r in range(80, 85): a(f"v_mov_b32_dpp v{r}, v{r} row_ror:4 {DPP}")
    a("s_sub_u32 s40, s40, 1\ns_cmp_lg_u32 s40, 0\ns_cbranch_scc1 Lp_loop")
    for t in mf(100): a(t)
    a("v_lshlrev_b32 v14, 5, v0\nv_sub_u32 v14, 8188, v14")
    for jj in range(8): a(f"v_subrev_u32 v{16+jj}, {4*jj}, v14\nv_cvt_f32_u32 v{16+jj}, v{16+jj}")
    for p in range(4):
        a(f"""
        v_cvt_pk_bf16_f32 v{16+2*p}, v{16+2*p}, v{17+2*p}
        v_and_b32 v{17+2*p}, s54, v{16+2*p}
        v_lshlrev_b32 v{16+2*p}, 16, v{16+2*p}
        v_cvt_u32_f32 v{17+2*p}, v{17+2*p}
        v_cvt_u32_f32 v{16+2*p}, v{16+2*p}
        """)
    for t in range(3):
        for i in range(4): a(f"ds_write_b32 v{60+t}, v{68+4*t+i} offset:{32*i}")
    a(f"""
    s_lshl_b32 s40, s2, 13
    s_add_u32 s40, s40, {KR}
    s_add_u32 s41, s40, 4096
    v_lshlrev_b32 v15, 4, v0
    s_waitcnt lgkmcnt(0)
    s_barrier
    """)
    for dd in range(2):
        for jj in range(8):
            a(f"ds_read_b32 v{24+jj}, v{16+jj} offset:{2*dd*8704}\nds_read_b32 v{32+jj}, v{16+jj} offset:{(2*dd+1)*8704}")
        a("s_waitcnt lgkmcnt(0)")
        for jj in range(8): a(f"v_add_f32 v{24+jj}, v{24+jj}, v{32+jj}")
        for p in range(4): a(f"v_cvt_pk_bf16_f32 v{40+4*dd+p}, v{24+2*p}, v{25+2*p}")
        a(f"buffer_store_dwordx4 v[{40+4*dd}:{43+4*dd}], v15, s[48:51], s{40+dd} offen")
    a("s_endpgm")

def gemm1(a):
    WB = 32768
    a("""
    s_load_dwordx2 s[16:17], s[0:1], 0
    s_load_dwordx4 s[20:23], s[0:1], 80
    s_load_dwordx2 s[24:25], s[0:1], 128
    v_lshrrev_b32 v56, 6, v0
    v_and_b32 v57, 63, v0
    v_readfirstlane_b32 s3, v56
    s_and_b32 s4, s2, 7
    s_sub_u32 s5, s2, 256
    s_lshr_b32 s5, s5, 3
    s_mul_i32 s4, s4, 30
    s_add_u32 s4, s4, s5
    s_cmp_ge_u32 s4, 120
    s_cselect_b32 s5, 8, 0
    s_cselect_b32 s6, 120, 0
    s_sub_u32 s4, s4, s6
    s_lshr_b32 s6, s4, 3
    s_and_b32 s4, s4, 7
    s_add_u32 s5, s5, s4
    s_lshr_b32 s7, s3, 1
    s_and_b32 s8, s3, 1
    """)
    a("""
    s_lshl_b32 s9, s5, 17
    s_lshl_b32 s10, s3, 15
    s_add_u32 s9, s9, s10
    v_lshrrev_b32 v58, 3, v57
    v_lshlrev_b32 v58, 10, v58
    v_add_u32 v58, s9, v58
    v_lshrrev_b32 v59, 4, v57
    v_and_b32 v60, 7, v57
    v_xor_b32 v61, v60, v59
    v_lshl_add_u32 v11, v61, 4, v58
    v_xor_b32 v61, 4, v61
    v_lshl_add_u32 v12, v61, 4, v58
    v_add_u32 v12, 0x2000, v12
    v_add_u32 v13, 0x4000, v11
    v_add_u32 v14, 0x4000, v12
    s_mul_i32 s9, s8, 192
    s_mul_i32 s10, s6, 192
    s_lshl_b32 s11, s7, 1
    """)
    for qq in range(3):
        a(f"""
        v_add_u32 v58, s9, v57
        v_add_u32 v58, {64*qq}, v58
        v_mul_u32_u24 v60, 43691, v58
        v_lshrrev_b32 v60, 19, v60
        v_mul_u32_u24 v61, 12, v60
        v_sub_u32 v61, v58, v61
        v_xor_b32 v61, s11, v61
        v_mul_u32_u24 v60, 2752, v60
        v_lshl_add_u32 v60, v61, 4, v60
        v_add_u32 v{8+qq}, s10, v60
        """)
    a("s_waitcnt lgkmcnt(0)")
    srd(a, 28, 16, 2048*1024)
    a("s_cmp_eq_u32 s7, 0\ns_cselect_b32 s32, s20, s22\ns_cselect_b32 s33, s21, s23\ns_mov_b32 s34, 1409024\ns_mov_b32 s35, 0x00020000")
    srd(a, 36, 24, WS_SZ)
    a(f"""
    s_lshl_b32 s12, s3, 12
    s_mul_i32 s13, s3, 3072
    s_add_u32 s13, s13, {WB}
    s_mov_b32 s14, 0
    s_mov_b32 s15, 0
    """)
    def dma_x(slot):
        L = []
        for qq in range(4):
            L.append(f"s_add_u32 m0, s12, {slot*16384+qq*1024}\nbuffer_load_dwordx4 v{11+qq}, s[28:31], s14 offen lds")
        L[-1] += "\ns_add_u32 s14, s14, 128"
        return L
    def dma_w(slot):
        L = []
        for qq in range(3):
            L.append(f"s_add_u32 m0, s13, {slot*12288+qq*1024}\nbuffer_load_dwordx4 v{8+qq}, s[32:35], s15 offen lds")
        L[-1] += f"\ns_add_u32 s15, s15, {32*2752}"
        return L
    for t in dma_x(0) + dma_w(0) + dma_w(1) + dma_w(2) + dma_x(1) + dma_w(3): a(t)
    a(f"""
    v_and_b32 v58, 31, v57
    v_lshrrev_b32 v59, 5, v57
    v_lshrrev_b32 v60, 1, v58
    v_and_b32 v60, 7, v60
    v_xor_b32 v60, v60, v59
    s_lshl_b32 s9, s7, 13
    v_lshlrev_b32 v58, 7, v58
    v_add_u32 v58, s9, v58
    """)
    for ks in range(4): a(f"v_xor_b32 v61, {2*ks}, v60\nv_lshl_add_u32 v{4+ks}, v61, 4, v58")
    a(f"""
    v_bfe_u32 v58, v57, 4, 1
    v_bfe_u32 v60, v57, 2, 2
    v_lshl_add_u32 v60, v59, 3, v60
    v_mul_u32_u24 v60, 192, v60
    v_mul_u32_u24 v61, 6144, v58
    v_add_u32 v60, v60, v61
    v_and_b32 v61, 3, v57
    v_lshl_add_u32 v60, v61, 3, v60
    v_add_u32 v60, {WB}, v60
    s_mul_i32 s9, s8, 3
    """)
    for tt in range(3):
        a(f"s_add_u32 s10, s9, {tt}\nv_xor_b32 v61, s10, v58\nv_lshl_add_u32 v{1+tt}, v61, 5, v60")
    a("v_lshlrev_b32 v15, 4, v57")
    for r in range(64, 160): a(f"v_mov_b32 v{r}, 0")
    F = [(16, 28), (36, 48)]
    def reads(f, s, ks):
        wb, xb = F[f]; L = []
        xo = ((s >> 1) & 1) * 16384; ks4 = (s & 1) * 2 + ks
        wo = (s & 3) * 12288 + ks * 3072
        L.append(f"ds_read_b128 v[{xb}:{xb+3}], v{4+ks4} offset:{xo}")
        for tt in range(3):
            L.append(f"ds_read_b64_tr_b16 v[{wb+4*tt}:{wb+4*tt+1}], v{1+tt} offset:{wo}")
            L.append(f"ds_read_b64_tr_b16 v[{wb+4*tt+2}:{wb+4*tt+3}], v{1+tt} offset:{wo+768}")
        L.append(f"ds_read_b128 v[{xb+4}:{xb+7}], v{4+ks4} offset:{xo+4096}")
        return L
    def mfmas(f):
        wb, xb = F[f]; L = []
        for mt in range(2):
            for tt in range(3):
                c = 64 + 16*(2*tt+mt)
                L.append(f"v_mfma_f32_32x32x16_bf16 v[{c}:{c+15}], v[{wb+4*tt}:{wb+4*tt+3}], v[{xb+4*mt}:{xb+4*mt+3}], v[{c}:{c+15}]")
        return L
    a("s_waitcnt vmcnt(13)\ns_barrier")
    for t in reads(0, 0, 0): a(t)
    def stage(s, dma, vm, last=False):
        for t in reads(1, s, 1): a(t)
        a("s_waitcnt lgkmcnt(8)")
        for t in mfmas(0): a(t)
        if last:
            a("s_waitcnt lgkmcnt(0)")
            for t in mfmas(1): a(t)
            return
        a(f"s_waitcnt lgkmcnt(0) vmcnt({vm})\ns_barrier")
        m = mfmas(1); r = reads(0, s+1, 0)
        d = []
        if dma:
            if s & 1: d += dma_x((s >> 1) & 1)
            d += dma_w(s & 3)
        seq = [m[0]] + r[0:3] + [m[1]] + r[3:6] + [m[2]] + r[6:8] + d[0:1] + [m[3]] + d[1:3] + [m[4]] + d[3:5] + [m[5]] + d[5:]
        for t in seq: a(t)
    a("s_mov_b32 s40, 3\nLg1_loop:")
    for s in range(4): stage(s, True, 6 if s & 1 else 10)
    a("s_sub_u32 s40, s40, 1\ns_cmp_lg_u32 s40, 0\ns_cbranch_scc1 Lg1_loop")
    stage(12, False, 10); stage(13, False, 3); stage(14, False, 0); stage(15, False, 0, last=True)
    c1 = -2*0.7978845608028654*LOG2E; c2 = c1*0.044715
    a(f"""
    v_mov_b32 v56, {f2u(c1):#x}
    v_mov_b32 v57, {f2u(c1):#x}
    v_mov_b32 v58, 1.0
    v_mov_b32 v59, 1.0
    s_mov_b32 s42, {f2u(c2):#x}
    s_mov_b32 s43, {f2u(c2):#x}
    s_lshl_b32 s9, s5, 2
    s_lshl_b32 s10, s7, 1
    s_add_u32 s9, s9, s10
    s_mul_i32 s9, s9, {KB}
    s_mul_i32 s10, s6, 6
    s_mul_i32 s11, s8, 3
    s_add_u32 s10, s10, s11
    s_add_u32 s9, s9, s10
    s_lshl_b32 s9, s9, 10
    s_add_u32 s11, s9, {KB*1024}
    """)
    for tt in range(3):
        a(f"s_cmp_ge_u32 s10, {KB-tt}\ns_cbranch_scc1 Lg1_done")
        for mt in range(2):
            c = 64 + 16*(2*tt+mt); q = 16 + 8*mt; o = 32 + 4*((2*tt+mt) % 4)
            P = lambda b, p: f"v[{b+2*p}:{b+2*p+1}]"
            for p in range(4): a(f"v_pk_mul_f32 {P(q,p)}, {P(c,p)}, {P(c,p)}")
            for p in range(4): a(f"v_pk_fma_f32 {P(q,p)}, {P(q,p)}, s[42:43], v[56:57]")
            for p in range(4): a(f"v_pk_mul_f32 {P(q,p)}, {P(q,p)}, {P(c,p)}")
            for i in range(8): a(f"v_exp_f32 v{q+i}, v{q+i}")
            for p in range(4): a(f"v_pk_mul_f32 {P(c,p)}, {P(c,p)}, {P(c+8,p)}")
            for p in range(4): a(f"v_pk_add_f32 {P(q,p)}, {P(q,p)}, v[58:59]")
            for i in range(8): a(f"v_rcp_f32 v{q+i}, v{q+i}")
            for p in range(4): a(f"v_pk_mul_f32 {P(c,p)}, {P(c,p)}, {P(q,p)}")
            for p in range(4): a(f"v_cvt_pk_bf16_f32 v{o+p}, v{c+2*p}, v{c+2*p+1}")
            a(f"buffer_store_dwordx4 v[{o}:{o+3}], v15, s[36:39], s{9 if mt == 0 else 11} offen offset:{tt*1024}")
    a("Lg1_done:\ns_endpgm")

CP = 4160; DSZ = 4*CP + 4608
def conv(a, merged):
    sc = " sc1" if merged else ""
    a("""
    s_load_dwordx2 s[16:17], s[0:1], 64
    s_load_dwordx4 s[20:23], s[0:1], 120
    v_lshrrev_b32 v1, 6, v0
    v_and_b32 v2, 63, v0
    v_readfirstlane_b32 s3, v1
    v_lshlrev_b32 v3, 4, v0
    s_lshl_b32 s4, s2, 13
    s_lshr_b32 s5, s3, 1
    s_and_b32 s6, s3, 1
    s_lshl_b32 s7, s2, 2
    s_lshl_b32 s8, s5, 1
    s_add_u32 s7, s7, s8
    v_mov_b32 v4, s7
    s_waitcnt lgkmcnt(0)
    """)
    srd(a, 24, 22, WS_SZ)
    a(f"""
    s_add_u32 s8, s4, {KR}
    s_add_u32 s9, s4, {KR+4096}
    s_add_u32 s10, s4, {UT}
    s_add_u32 s11, s4, {UT+4096}
    buffer_load_dwordx4 v[16:19], v3, s[24:27], s8 offen
    buffer_load_dwordx2 v[20:21], v3, s[24:27], s8 offen offset:16
    buffer_load_dwordx4 v[24:27], v3, s[24:27], s10 offen
    buffer_load_dwordx4 v[32:35], v3, s[24:27], s9 offen
    buffer_load_dwordx2 v[36:37], v3, s[24:27], s9 offen offset:16
    buffer_load_dwordx4 v[40:43], v3, s[24:27], s11 offen
    global_load_ushort v5, v4, s[16:17]
    v_mov_b32 v48, 0
    v_mov_b32 v49, 0
    v_mov_b32 v50, 0
    v_mov_b32 v51, 0
    """)
    a(f"""
    v_and_b32 v6, 31, v0
    v_lshlrev_b32 v7, 4, v6
    v_add_u32 v7, {4*CP}, v7
    v_bfe_u32 v8, v0, 5, 1
    v_mul_u32_u24 v8, {DSZ}, v8
    v_add_u32 v7, v7, v8
    v_and_b32 v8, 3, v0
    v_lshlrev_b32 v8, 4, v8
    v_bfe_u32 v9, v0, 2, 2
    v_mul_u32_u24 v9, {CP}, v9
    v_add3_u32 v8, v8, v9, 0
    v_bfe_u32 v9, v0, 4, 1
    v_mul_u32_u24 v9, {DSZ}, v9
    v_add_u32 v8, v8, v9
    v_add_u32 v8, 0x1000, v8
    v_cmp_gt_u32 vcc, 64, v0
    v_cndmask_b32 v7, v8, v7, vcc
    ds_write_b128 v7, v[48:51]
    """)
    a(f"""
    v_and_b32 v6, 15, v2
    v_lshrrev_b32 v7, 4, v2
    v_sub_u32 v8, 3, v6
    v_and_b32 v8, 3, v8
    v_sub_u32 v9, 2031, v6
    v_lshl_add_u32 v9, v7, 3, v9
    v_sub_u32 v9, v9, v8
    v_lshlrev_b32 v9, 1, v9
    v_mul_u32_u24 v8, {CP}, v8
    v_add_u32 v9, v9, v8
    s_mul_i32 s12, s5, {DSZ}
    s_lshl_b32 s13, s6, 8
    s_sub_u32 s13, s12, s13
    s_sub_u32 s14, s13, {512*7+192}
    v_add_u32 v10, s14, v9
    v_lshlrev_b32 v8, 5, v6
    v_lshl_add_u32 v11, v7, 4, v8
    s_add_u32 s14, s13, {4*CP+480-192}
    v_add_u32 v11, s14, v11
    v_lshl_add_u32 v12, v7, 3, v8
    v_cmp_eq_u32 vcc, 255, v0
    """)
    for r in range(192, 224): a(f"v_mov_b32 v{r}, 0")
    for dd in range(2):
        b = 16 + 16*dd
        a(f"s_waitcnt vmcnt({4 if dd == 0 else 1})")
        a(f"v_cndmask_b32 v{b+4}, v{b+4}, v48, vcc\nv_cndmask_b32 v{b+5}, v{b+5}, v48, vcc")
        a(f"ds_write_b128 v3, v[{b}:{b+3}] offset:{dd*DSZ}")
        a(f"ds_write_b128 v3, v[{b+8}:{b+11}] offset:{dd*DSZ+4*CP+512}")
        for i in range(4): a(f"v_alignbit_b32 v{52+i}, v{b+i+1}, v{b+i}, 16")
        for i in range(4): a(f"v_mov_b32 v{56+i}, v{b+i+1}")
        for i in range(4): a(f"v_alignbit_b32 v{60+i}, v{b+i+2}, v{b+i+1}, 16")
        for sg in range(1, 4): a(f"ds_write_b128 v3, v[{48+4*sg}:{51+4*sg}] offset:{dd*DSZ+sg*CP}")
        if dd == 0: a("s_waitcnt lgkmcnt(0)")
    a("s_waitcnt lgkmcnt(0)\ns_barrier")
    S = [64, 128]
    def reads(st, qi):
        L = []; b = S[st]
        for p in range(8):
            L.append(f"ds_read_b128 v[{b+32+4*p}:{b+35+4*p}], v11 offset:{512*p+64*(3-qi)}")
            L.append(f"ds_read_b64 v[{b+4*p}:{b+4*p+1}], v10 offset:{512*(7-p)+64*(3-qi)}")
            L.append(f"ds_read_b64 v[{b+4*p+2}:{b+4*p+3}], v10 offset:{512*(7-p)+64*(3-qi)+8}")
        return L
    def mf(st):
        L = []; b = S[st]
        for p in range(8):
            for I in range(p, 8):
                c = 192 + 4*I; P = I - p
                L.append(f"v_mfma_f32_16x16x32_bf16 v[{c}:{c+3}], v[{b+4*p}:{b+4*p+3}], v[{b+32+4*P}:{b+35+4*P}], v[{c}:{c+3}]")
        return L
    for t in reads(0, 0): a(t)
    for qi in range(4):
        a("s_waitcnt lgkmcnt(0)")
        nxt = reads((qi+1) & 1, qi+1) if qi < 3 else []
        for t in interleave(mf(qi & 1), nxt, 1): a(t)
    RB = 2*DSZ
    a(f"""
    v_lshlrev_b32 v13, 4, v2
    s_lshl_b32 s14, s3, 12
    s_add_u32 s14, s14, {RB}
    v_add_u32 v14, s14, v13
    s_xor_b32 s15, s3, 1
    s_lshl_b32 s15, s15, 12
    s_add_u32 s15, s15, {RB}
    v_add_u32 v15, s15, v13
    s_lshl_b32 s13, s6, 11
    s_add_u32 s14, s12, s13
    s_add_u32 s14, s14, {4*CP+512}
    v_add_u32 v16, s14, v12
    s_nop 7
    s_cmp_eq_u32 s6, 0
    s_cbranch_scc1 Lc_lo
    """)
    for I in range(4): a(f"ds_write_b128 v14, v[{192+4*I}:{195+4*I}] offset:{1024*I}")
    for r in range(16): a(f"v_mov_b32 v{64+r}, v{208+r}")
    a("s_branch Lc_join\nLc_lo:")
    for I in range(4): a(f"ds_write_b128 v14, v[{208+4*I}:{211+4*I}] offset:{1024*I}")
    for r in range(16): a(f"v_mov_b32 v{64+r}, v{192+r}")
    a("Lc_join:")
    for I in range(4): a(f"ds_read_b64 v[{96+2*I}:{97+2*I}], v16 offset:{512*I}")
    a(f"""
    s_waitcnt vmcnt(0) lgkmcnt(0)
    s_barrier
    v_lshlrev_b32 v5, 16, v5
    s_mov_b32 s28, 0xffff0000
    s_lshl_b32 s14, s5, 12
    s_add_u32 s14, s14, s4
    s_add_u32 s14, s14, s13
    s_add_u32 s14, s14, {AT}
    """)
    for I in range(4): a(f"ds_read_b128 v[{80+4*I}:{83+4*I}], v15 offset:{1024*I}")
    for I in range(4):
        for hh in range(2):
            u = 96 + 2*I + hh; f = 64 + 4*I + 2*hh
            a(f"v_lshlrev_b32 v104, 16, v{u}\nv_and_b32 v105, s28, v{u}\nv_fmac_f32 v{f}, v104, v5\nv_fmac_f32 v{f+1}, v105, v5")
    a("s_waitcnt lgkmcnt(0)")
    for r in range(16): a(f"v_add_f32 v{64+r}, v{64+r}, v{80+r}")
    for I in range(4):
        a(f"v_cvt_pk_bf16_f32 v{96+2*I}, v{64+4*I}, v{65+4*I}\nv_cvt_pk_bf16_f32 v{97+2*I}, v{66+4*I}, v{67+4*I}")
        a(f"buffer_store_dwordx2 v[{96+2*I}:{97+2*I}], v12, s[24:27], s14 offen offset:{512*I}{sc}")
    if merged:
        a("""
        s_waitcnt vmcnt(0)
        s_barrier
        s_cmp_lg_u32 s3, 0
        s_cbranch_scc1 Lc_end
        s_lshr_b32 s14, s2, 5
        s_lshl_b32 s14, s14, 5
        v_mov_b32 v1, s14
        v_mov_b32 v2, 1
        s_mov_b64 exec, 1
        global_atomic_add v1, v2, s[20:21] sc1
        s_waitcnt vmcnt(0)
Lc_end:
        """)
    a("s_endpgm")

def gemm2(a, merged):
    D = OPT["depth"]; NS = KB // 4
    sc = " sc1" if merged else ""
    a(f"""
    s_load_dwordx2 s[16:17], s[0:1], 112
    s_load_dwordx4 s[20:23], s[0:1], 120
    v_lshrrev_b32 v1, 6, v0
    v_and_b32 v2, 63, v0
    v_readfirstlane_b32 s3, v1
    v_lshlrev_b32 v3, 4, v2
    s_and_b32 s4, s2, 7
    s_bfe_u32 s5, s2, 0x50003
    s_lshl_b32 s4, s4, 2
    s_lshr_b32 s6, s5, 3
    s_add_u32 s4, s4, s6
    s_and_b32 s5, s5, 7
    s_lshr_b32 s6, s3, 1
    s_and_b32 s7, s3, 1
    s_lshl_b32 s8, s5, 1
    s_add_u32 s8, s8, s6
    s_lshl_b32 s9, s4, 1
    s_add_u32 s9, s9, s7
    s_mul_i32 s10, s3, {NS*1024}
    s_mul_i32 s12, s8, {KB*1024}
    s_xor_b32 s13, s8, 1
    s_mul_i32 s13, s13, {KB*1024}
    s_mul_i32 s14, s9, {KB*1024}
    s_xor_b32 s15, s9, 1
    s_mul_i32 s15, s15, {KB*1024}
    s_add_u32 s11, s10, {WDF}
    s_add_u32 s12, s12, s11
    s_add_u32 s13, s13, s11
    s_add_u32 s14, s14, s10
    s_add_u32 s15, s15, s10
    s_waitcnt lgkmcnt(0)
    """)
    srd(a, 24, 22, WS_SZ)
    srd(a, 28, 16, 2048*1024)
    RB = 80
    def loads(st):
        L = []; b = RB + 16*(st % D)
        for i in range(4):
            L.append(f"buffer_load_dwordx4 v[{b+4*i}:{b+4*i+3}], v3, s[24:27], s{12+i} offen offset:{1024*(st%4)}")
        if st % 4 == 3:
            L[-1] += "".join(f"\ns_add_u32 s{12+i}, s{12+i}, 4096" for i in range(4))
        return L
    for st in range(D):
        for t in loads(st): a(t)
    for r in range(16, 80): a(f"v_mov_b32 v{r}, 0")
    for st in range(NS):
        b = RB + 16*(st % D)
        a(f"s_waitcnt vmcnt({4*(min(st+D, NS)-st-1)})")
        for i in range(2):
            for j in range(2):
                c = 16 + 16*(2*i+j)
                a(f"v_mfma_f32_32x32x16_bf16 v[{c}:{c+15}], v[{b+4*i}:{b+4*i+3}], v[{b+8+4*j}:{b+11+4*j}], v[{c}:{c+15}]")
        if st + D < NS:
            for t in loads(st + D): a(t)
    if merged:
        a("""
        s_lshl_b32 s32, s5, 5
        v_mov_b32 v4, s32
Lg2_poll:
        global_load_dword v5, v4, s[20:21] sc1
        s_waitcnt vmcnt(0)
        v_readfirstlane_b32 s33, v5
        s_cmp_ge_u32 s33, 32
        s_cbranch_scc1 Lg2_go
        s_sleep 4
        s_branch Lg2_poll
Lg2_go:
        """)
    a(f"""
    s_lshl_b32 s32, s8, 17
    s_lshl_b32 s33, s9, 6
    s_add_u32 s32, s32, s33
    s_add_u32 s32, s32, {AT}
    s_add_u32 s33, s32, 65536
    v_lshrrev_b32 v4, 2, v2
    v_lshlrev_b32 v4, 12, v4
    v_and_b32 v5, 3, v2
    v_lshl_add_u32 v4, v5, 4, v4
    buffer_load_dwordx4 v[80:83], v4, s[24:27], s32 offen{sc}
    buffer_load_dwordx4 v[84:87], v4, s[24:27], s33 offen{sc}
    v_and_b32 v6, 31, v2
    v_lshlrev_b32 v7, 2, v6
    s_lshl_b32 s34, s9, 7
    s_add_u32 s34, s34, {G_OFF}
    buffer_load_dword v8, v7, s[24:27], s34 offen
    """)
    for x in range(1, 4):
        a(f"s_xor_b32 s35, s3, {x}\ns_mul_i32 s35, s35, 12288\ns_add_u32 s35, s35, {(x-1)*4096}\nv_add_u32 v{8+x}, s35, v3")
    a("s_mul_i32 s35, s3, 12288\nv_add_u32 v12, s35, v3\ns_nop 4")
    for x in range(1, 4):
        for qd in range(4): a(f"ds_write_b128 v{8+x}, v[{16+16*x+4*qd}:{19+16*x+4*qd}] offset:{1024*qd}")
    a(f"""
    s_lshl_b32 s35, s3, 11
    s_add_u32 s35, s35, 49152
    v_add_u32 v13, s35, v3
    v_lshrrev_b32 v14, 5, v2
    v_bfe_u32 v15, v2, 2, 2
    v_lshl_add_u32 v15, v14, 2, v15
    v_lshlrev_b32 v15, 6, v15
    v_bfe_u32 v1, v2, 4, 1
    v_lshl_add_u32 v15, v1, 5, v15
    v_lshl_add_u32 v15, v5, 3, v15
    v_add_u32 v15, s35, v15
    v_lshlrev_b32 v6, 10, v6
    v_lshl_add_u32 v6, v14, 4, v6
    s_lshl_b32 s36, s9, 15
    s_lshl_b32 s37, s8, 6
    s_add_u32 s36, s36, s37
    s_mov_b32 s38, 0xffff0000
    s_waitcnt vmcnt(0)
    ds_write_b128 v13, v[80:83]
    ds_write_b128 v13, v[84:87] offset:1024
    v_sub_f32 v9, 1.0, v8
    v_cvt_pk_bf16_f32 v9, v9, v9
    v_lshlrev_b32 v9, 16, v9
    s_waitcnt lgkmcnt(0)
    s_barrier
    """)
    for x in range(3):
        for qd in range(4): a(f"ds_read_b128 v[{96+16*x+4*qd}:{99+16*x+4*qd}], v12 offset:{4096*x+1024*qd}")
    for qd in range(4): a(f"ds_read_b64_tr_b16 v[{80+2*qd}:{81+2*qd}], v15 offset:{512*qd}")
    for x in range(3):
        a(f"s_waitcnt lgkmcnt({12-4*x})")
        for r in range(16): a(f"v_add_f32 v{16+r}, v{16+r}, v{96+16*x+r}")
    a("s_waitcnt lgkmcnt(0)")
    for p in range(8):
        a(f"""
        v_lshlrev_b32 v10, 16, v{80+p}
        v_and_b32 v11, s38, v{80+p}
        v_mul_f32 v10, v8, v10
        v_mul_f32 v11, v8, v11
        v_fmac_f32 v10, v9, v{16+2*p}
        v_fmac_f32 v11, v9, v{17+2*p}
        v_cvt_pk_bf16_f32 v{88+p}, v10, v11
        """)
    for pr in range(2):
        b = 88 + 4*pr
        a(f"v_permlane32_swap_b32 v{b}, v{b+2}\nv_permlane32_swap_b32 v{b+1}, v{b+3}")
        a(f"buffer_store_dwordx4 v[{b}:{b+3}], v6, s[28:31], s36 offen offset:{32*pr}")
    a("s_endpgm")

def kd(name, vgpr=256):
    return f""".p2align 6
.amdhsa_kernel {name}
  .amdhsa_next_free_vgpr {vgpr}
  .amdhsa_next_free_sgpr 96
  .amdhsa_accum_offset {vgpr}
  .amdhsa_group_segment_fixed_size 0
  .amdhsa_kernarg_size 136
  .amdhsa_user_sgpr_count 2
  .amdhsa_user_sgpr_kernarg_segment_ptr 1
  .amdhsa_system_sgpr_workgroup_id_x 1
.end_amdhsa_kernel
"""
def head(a, name):
    a.raw(f".globl {name}\n.p2align 8\n.type {name},@function"); a.label(name)

def main(path):
    merged = OPT["merge"]
    ref = open("gated_mix__ssm_conv_s4__geglu_ffn__prompt.s.ref").read().split("\n")
    hdr = [l for l in ref if l.startswith(";") and "@launch" not in l and "Override" not in l and "grid=ceil" not in l]
    L = ["; @launch kernel=k1_kernel grid=(496,1,1) block=(256,1,1) lds=81920"]
    if merged: L += ["; @launch kernel=k2_kernel grid=(512,1,1) block=(256,1,1) lds=61440"]
    else: L += ["; @launch kernel=k2_kernel grid=(256,1,1) block=(256,1,1) lds=61440", "; @launch kernel=k3_kernel grid=(256,1,1) block=(256,1,1) lds=61440"]
    a = Asm()
    head(a, "k1_kernel")
    a("s_cmp_ge_u32 s2, 256\ns_cbranch_scc1 Lk1_b")
    prep(a)
    a("Lk1_b:\ns_cmp_ge_u32 s2, 496\ns_cbranch_scc1 Lk1_x")
    gemm1(a)
    a("Lk1_x:\ns_endpgm")
    head(a, "k2_kernel")
    a("s_cmp_ge_u32 s2, 256\ns_cbranch_scc1 Lk2_b")
    conv(a, merged)
    if merged:
        a("Lk2_b:\ns_cmp_ge_u32 s2, 512\ns_cbranch_scc1 Lk2_x")
        gemm2(a, merged)
        a("Lk2_x:\ns_endpgm")
        names = ["k1_kernel", "k2_kernel"]
    else:
        a("Lk2_b:\ns_endpgm")
        head(a, "k3_kernel")
        a("s_cmp_ge_u32 s2, 256\ns_cbranch_scc1 Lk2_x")
        gemm2(a, merged)
        a("Lk2_x:\ns_endpgm")
        names = ["k1_kernel", "k2_kernel", "k3_kernel"]
    out = "\n".join(hdr + L) + '\n.amdgcn_target "amdgcn-amd-amdhsa--gfx950"\n.text\n' + a.text()
    out += '.section .rodata,"a"\n' + "".join(kd(n) for n in names)
    open(path, "w").write(out)

if __name__ == "__main__":
    for kv in sys.argv[2:]:
        k, v = kv.split("="); OPT[k] = int(v)
    main(sys.argv[1])
```

```python
import sys, struct, re
from asmlib import Asm
def f2u(x): return struct.unpack("<I", struct.pack("<f", x))[0]
KB = 88
H_OFF = 0; WDF = 64*KB*1024; UT = WDF + 16*KB*1024; KR = UT + 0x200000; AT = KR + 0x200000; G_OFF = AT + 0x200000
FE = G_OFF + 0x2000; FWF = FE + 0x2000; FL = FWF + 0x8000; FH = FL + 0x800; FC = FH + 0x800; FG = FC + 0x1000
ST_OFF = G_OFF + 0x10000
WS_SZ = ST_OFF + 0x80000
DPP = "row_mask:0xf bank_mask:0xf"
LOG2E = 1.4426950408889634
OPT = dict(stamps=0, dbg=0, pf=0, sp=12, sp2=24, wq=2, rr=1, rc=2, map=0, pa0=2, pa1=1, pb0=3, sl2=8, pb1=0, pb2=0, pb3=0, sl=2)

def srd(a, d, b, n):
    a(f"s_mov_b32 s{d}, s{b}\ns_mov_b32 s{d+1}, s{b+1}\ns_mov_b32 s{d+2}, {n:#x}\ns_mov_b32 s{d+3}, 0x00020000")

def stamp(a, k):
    if OPT["stamps"]:
        a(f"s_memrealtime s[{70+2*k}:{71+2*k}]")
        if k == 0: a("s_memtime s[64:65]")
def endp(a, kern, srdw, n):
    if OPT["stamps"]:
        a(f"s_waitcnt vmcnt(0)\ns_memrealtime s[{70+2*n}:{71+2*n}]\ns_memtime s[66:67]\ns_mov_b64 exec, 1\ns_waitcnt lgkmcnt(0)")
        a(f"s_lshl_b32 s68, s2, 2\ns_add_u32 s68, s68, s3\ns_lshl_b32 s68, s68, 6\ns_add_u32 s68, s68, {ST_OFF+kern*0x40000}\nv_mov_b32 v1, 0")
        a(f"s_sub_u32 s66, s66, s64\nv_mov_b32 v2, s66\nbuffer_store_dword v2, v1, s[{srdw}:{srdw+3}], s68 offen offset:60")
        for k in range(n+1): a(f"v_mov_b32 v2, s{70+2*k}\nbuffer_store_dword v2, v1, s[{srdw}:{srdw+3}], s68 offen offset:{4*k}")
    a("s_endpgm")

def interleave(main, fill, every, start=0):
    out = []; fi = 0
    for i, m in enumerate(main):
        out.append(m)
        if i >= start and (i - start) % every == every - 1 and fi < len(fill): out.append(fill[fi]); fi += 1
    out += fill[fi:]
    return out

SPIN = 1 << 20
def tagcheck(a, v, vz, dbg, nm):
    a(f"""
    s_mov_b32 s62, {SPIN}
Ltag_{nm}:
    v_readfirstlane_b32 s60, v{v}
    v_readfirstlane_b32 s61, v{v+1}
    s_sub_u32 s62, s62, 1
    s_cbranch_scc1 Ltag_{nm}_ok
    s_cmp_lg_u32 s60, 0
    s_cbranch_scc1 Ltag_{nm}_ok
    s_sleep 2
    global_load_dwordx2 v[{v}:{v+1}], v{vz}, s[{dbg}:{dbg+1}] sc1
    s_waitcnt vmcnt(0)
    s_branch Ltag_{nm}
Ltag_{nm}_ok:
    """)
def poll(a, v, va, nm, mask, sl=4, w=2):
    a(f"""
    s_mov_b32 s62, {SPIN}
    s_mov_b64 exec, {mask}
    s_branch Lpoll_{nm}_in
Lpoll_{nm}:
    s_sleep {sl}
Lpoll_{nm}_in:
    {f'buffer_load_dwordx2 v[{v}:{v+1}]' if w == 2 else f'buffer_load_dword v{v}'}, v{va}, s[48:51], 0 offen sc1
    s_waitcnt vmcnt(0)
    {f'v_cmp_ne_u64 vcc, s[60:61], v[{v}:{v+1}]' if w == 2 else f'v_cmp_ne_u32 vcc, s60, v{v}'}
    s_sub_u32 s62, s62, 1
    s_cbranch_scc1 Lpoll_{nm}_ok
    s_nop 0
    s_cbranch_vccnz Lpoll_{nm}
Lpoll_{nm}_ok:
    s_mov_b64 exec, -1
    """)
def wflag(a, s):
    a(f"""
    v_mov_b32 v14, s60
    s_mov_b64 exec, 1
    buffer_store_dword v14, v23, s[48:51], s{s} offen sc1
    s_mov_b64 exec, -1
    """)
def check(a, v, va, nm):
    a(f"v_cmp_ne_u64 vcc, s[60:61], v[{v}:{v+1}]\ns_nop 1\ns_cbranch_vccz Lpoll_{nm}_ok")
    poll(a, v, va, nm, -1, OPT['sl2'])
def flag(a, off, nm):
    a(f"""
    s_cmp_lg_u32 s3, 0
    s_cbranch_scc1 Lfl_{nm}
    v_mov_b32 v14, s60
    v_mov_b32 v15, s61
    v_mov_b32 v13, s63
    s_mov_b64 exec, 1
    buffer_store_dwordx2 v[14:15], v13, s[48:51], 0 offen offset:{off} sc1
    s_mov_b64 exec, -1
Lfl_{nm}:
    """)

TS = 8960; C0 = 2*TS; FR = 272; FW = 57*FR
CP = 4160; DSZ = 4*CP + 4608
def cmul(D, X, Y):
    p = lambda r: f"v[{r}:{r+1}]"
    return [f"v_pk_mul_f32 {p(D)}, {p(X)}, {p(Y)} op_sel:[0,0] op_sel_hi:[0,1]",
            f"v_pk_fma_f32 {p(D)}, {p(X)}, {p(Y)}, {p(D)} op_sel:[1,1,0] op_sel_hi:[1,0,1] neg_lo:[1,0,0]"]

def roleb(a):
    stamp(a, 0)
    a(f"s_setprio {OPT['pb0']}")
    a("""
    s_load_dwordx16 s[16:31], s[0:1], 0
    s_load_dwordx2 s[32:33], s[0:1], 96
    s_load_dwordx4 s[36:39], s[0:1], 120
    s_load_dwordx2 s[56:57], s[0:1], 64
    s_memrealtime s[60:61]
    v_lshrrev_b32 v1, 6, v0
    v_and_b32 v2, 63, v0
    v_readfirstlane_b32 s3, v1
    s_lshr_b32 s8, s2, 3
    s_and_b32 s9, s2, 7
    s_lshl_b32 s4, s9, 5
    s_add_u32 s4, s4, s8
    s_lshl_b32 s63, s4, 3
    s_lshl_b32 s5, s4, 9
    v_lshrrev_b32 v3, 1, v0
    v_lshl_add_u32 v3, v3, 2, s5
    s_lshl_b32 s7, s4, 2
    s_lshr_b32 s5, s3, 1
    v_and_b32 v5, 31, v2
    v_lshrrev_b32 v6, 5, v2
    s_lshl_b32 s11, s8, 16
    s_lshl_b32 s12, s9, 7
    s_add_u32 s11, s11, s12
    s_lshl_b32 s10, s3, 5
    s_add_u32 s11, s11, s10
    s_add_u32 s11, s11, 4096
    v_and_b32 v124, 7, v2
    v_lshrrev_b32 v125, 3, v2
    v_lshlrev_b32 v7, 13, v124
    v_lshl_add_u32 v7, v125, 2, v7
    v_add_u32 v7, s11, v7
    s_lshl_b32 s13, s2, 2
    s_add_u32 s13, s13, s3
    s_lshl_b32 s10, s8, 2
    s_add_u32 s10, s10, s3
    s_lshl_b32 s40, s10, 14
    s_add_u32 s40, s40, s12
    v_lshlrev_b32 v8, 10, v125
    v_lshl_add_u32 v8, v124, 4, v8
    v_add_u32 v8, s40, v8
    v_add_u32 v9, 0x2000, v8
    v_lshlrev_b32 v10, 4, v2
    v_mov_b32 v23, 0
    s_waitcnt lgkmcnt(0)
    """)
    a(f"s_add_u32 s63, s63, {FL}")
    srd(a, 40, 32, 1376*1024)
    srd(a, 48, 38, WS_SZ)
    a("""
    s_cmp_lg_u32 s13, 0
    s_cbranch_scc1 Lb_notag
    s_or_b32 s60, s60, 1
    v_mov_b32 v14, s60
    v_mov_b32 v15, s61
    s_mov_b64 exec, 1
    global_store_dwordx2 v23, v[14:15], s[36:37] sc1
    s_mov_b64 exec, -1
Lb_notag:
    """)
    if OPT.get("nob"): a("s_endpgm")
    for i in range(8): a(f"global_load_dword v{32+i}, v7, s[16:17] offset:{(i-4)*1024}")
    for i in range(6): a(f"global_load_dword v{16+i}, v3, s[{18+2*i}:{19+2*i}]")
    a("""
    s_load_dword s58, s[30:31], s7
    s_load_dword s59, s[56:57], s7
    s_lshl_b32 s15, s3, 11
    s_mov_b32 m0, s15
    buffer_load_dwordx4 v8, s[40:43], 0 offen lds
    s_add_u32 m0, s15, 1024
    buffer_load_dwordx4 v9, s[40:43], 0 offen lds
    """)
    a(f"s_setprio {OPT['pb1']}")
    npf = 0
    a(f"""
    v_and_b32 v12, 15, v2
    v_and_b32 v13, 7, v12
    v_lshrrev_b32 v14, 3, v12
    v_lshl_add_u32 v60, v14, 7, v13
    v_lshrrev_b32 v14, 2, v12
    v_lshlrev_b32 v14, 7, v14
    v_and_b32 v15, 3, v12
    v_lshl_add_u32 v14, v15, 1, v14
    v_add_u32 v14, 0x100, v14
    v_lshrrev_b32 v15, 1, v13
    v_lshlrev_b32 v15, 7, v15
    v_and_b32 v61, 1, v12
    v_lshl_add_u32 v15, v61, 2, v15
    v_add_u32 v15, 0x200, v15
    v_cmp_gt_u32 vcc, 8, v12
    v_cndmask_b32 v61, v15, v14, vcc
    s_and_b32 s6, s3, 1
    s_cmp_eq_u32 s6, 0
    s_cselect_b64 vcc, -1, 0
    v_cndmask_b32 v60, v61, v60, vcc
    v_min_u32 v67, 8, v12
    v_lshlrev_b32 v62, 7, v67
    v_add_u32 v62, 0x400, v62
    v_lshrrev_b32 v13, 4, v2
    v_lshlrev_b32 v14, 5, v13
    v_add_u32 v14, v14, v6
    v_lshrrev_b32 v15, 6, v60
    v_add3_u32 v60, v60, v15, v14
    v_lshrrev_b32 v15, 6, v62
    v_add3_u32 v62, v62, v15, v14
    s_mul_i32 s44, s5, {TS}
    v_lshl_add_u32 v60, v60, 2, s44
    v_lshl_add_u32 v62, v62, 2, s44
    s_mul_i32 s44, s3, {FW}
    s_add_u32 s44, s44, {C0}
    v_lshl_add_u32 v63, v2, 2, s44
    s_mul_i32 s44, s5, {2*FW}
    s_add_u32 s44, s44, {C0}
    v_lshl_add_u32 v14, v13, 4, s44
    v_mul_u32_u24 v15, {FR}, v12
    v_add_u32 v64, v14, v15
    s_mul_i32 s44, s6, {16*FR}
    v_add_u32 v65, s44, v64
    v_mul_u32_u24 v15, {FR}, v67
    v_add_u32 v66, v14, v15
    s_mov_b32 s52, 0x05040100
    s_mov_b32 s53, 0x07060302
    s_mov_b32 s54, 0xffff0000
    """)
    a("v_lshlrev_b32 v14, 5, v0\nv_sub_u32 v14, 8188, v14")
    for jj in range(12): a(f"v_subrev_u32 v{128+jj}, {4*jj}, v14\nv_max_i32 v{128+jj}, 0, v{128+jj}\nv_cvt_f32_u32 v{128+jj}, v{128+jj}")
    for p in range(6):
        x = 128 + 2*p
        a(f"""
        v_cvt_pk_bf16_f32 v{x}, v{x}, v{x+1}
        v_and_b32 v{x+1}, s54, v{x}
        v_lshlrev_b32 v{x}, 16, v{x}
        v_cvt_u32_f32 v{x+1}, v{x+1}
        v_cvt_u32_f32 v{x}, v{x}
        v_lshrrev_b32 v14, 8, v{x+1}
        v_lshrrev_b32 v15, 8, v{x}
        v_lshl_add_u32 v{x+1}, v14, 2, v{x+1}
        v_lshl_add_u32 v{x}, v15, 2, v{x}
        """)
    a(f"""
    v_and_b32 v68, 15, v2
    v_lshrrev_b32 v69, 4, v2
    v_sub_u32 v70, 3, v68
    v_and_b32 v70, 3, v70
    v_sub_u32 v71, 2031, v68
    v_lshl_add_u32 v71, v69, 3, v71
    v_sub_u32 v71, v71, v70
    v_lshlrev_b32 v71, 1, v71
    v_mul_u32_u24 v70, {CP}, v70
    v_add_u32 v71, v71, v70
    s_mul_i32 s12, s5, {DSZ}
    s_add_u32 s12, s12, {C0}
    s_lshl_b32 s44, s6, 8
    s_sub_u32 s44, s12, s44
    s_sub_u32 s45, s44, {512*7+192}
    v_add_u32 v120, s45, v71
    v_lshlrev_b32 v70, 5, v68
    v_lshl_add_u32 v121, v69, 4, v70
    s_add_u32 s45, s44, {4*CP+480-192}
    v_add_u32 v121, s45, v121
    v_lshl_add_u32 v122, v69, 3, v70
    v_and_b32 v68, 31, v0
    v_lshlrev_b32 v123, 4, v68
    v_add_u32 v123, {4*CP}, v123
    v_bfe_u32 v70, v0, 5, 1
    v_mul_u32_u24 v70, {DSZ}, v70
    v_add_u32 v123, v123, v70
    v_and_b32 v70, 3, v0
    v_lshlrev_b32 v70, 4, v70
    v_bfe_u32 v71, v0, 2, 2
    v_mul_u32_u24 v71, {CP}, v71
    v_add_u32 v70, v70, v71
    v_bfe_u32 v71, v0, 4, 1
    v_mul_u32_u24 v71, {DSZ}, v71
    v_add_u32 v70, v70, v71
    v_add_u32 v70, 0x1000, v70
    v_cmp_gt_u32 vcc, 64, v0
    v_cndmask_b32 v123, v70, v123, vcc
    v_mov_b32 v52, 0
    v_mov_b32 v53, 0
    v_mov_b32 v54, 0
    v_mov_b32 v55, 0
    s_lshl_b32 s44, s9, 2
    s_lshr_b32 s45, s8, 3
    s_add_u32 s45, s45, s44
    s_lshl_b32 s45, s45, 7
    s_add_u32 s14, s45, {FE}
    v_lshl_add_u32 v126, v5, 2, s14
    s_add_u32 s55, s44, s3
    s_lshl_b32 s55, s55, 5
    s_add_u32 s55, s55, s8
    s_lshl_b32 s55, s55, 2
    s_add_u32 s55, s55, {FE}
    s_lshl_b32 s44, s9, 18
    s_lshl_b32 s45, s8, 7
    s_add_u32 s44, s44, s45
    s_lshl_b32 s45, s3, 16
    s_add_u32 s44, s44, s45
    s_add_u32 s44, s44, {UT}
    v_lshlrev_b32 v7, 13, v125
    v_lshl_add_u32 v7, v124, 4, v7
    v_add_u32 v127, 0x1000, v7
    v_bfe_u32 v8, v2, 2, 2
    v_lshl_add_u32 v8, v6, 2, v8
    v_lshlrev_b32 v8, 7, v8
    v_bfe_u32 v9, v2, 4, 1
    v_lshl_add_u32 v8, v9, 5, v8
    v_and_b32 v9, 3, v2
    v_lshl_add_u32 v8, v9, 3, v8
    v_add_u32 v8, s15, v8
    s_mul_i32 s45, s9, {2*KB}
    s_add_u32 s45, s45, s10
    s_lshl_b32 s45, s45, 10
    s_add_u32 s45, s45, {WDF}
    s_add_u32 s46, s45, {KB*1024}
    s_lshl_b32 s11, s9, 7
    s_add_u32 s11, s11, s10
    s_lshl_b32 s11, s11, 2
    s_add_u32 s11, s11, {FC}
    v_and_b32 v9, 1, v2
    v_xor_b32 v9, 1, v9
    v_lshlrev_b32 v9, 4, v9
    s_waitcnt lgkmcnt(0)
    s_lshl_b32 s15, s5, 4
    s_lshr_b32 s58, s58, s15
    s_lshl_b32 s58, s58, 16
    s_lshr_b32 s59, s59, s15
    s_lshl_b32 s59, s59, 16
    v_mov_b32 v5, s59
    v_mov_b32 v22, s58
    v_mul_f32 v22, {f2u(LOG2E):#x}, v22
    v_exp_f32 v22, v22
    s_waitcnt vmcnt(2)
    """)
    stamp(a, 1)
    if OPT.get("x1"): a("s_endpgm")
    def ustores():
        for e, sel in ((0, 52), (1, 53)):
            for i in range(4): a(f"v_perm_b32 v{140+4*e+i}, v{33+2*i}, v{32+2*i}, s{sel}")
        a("s_setprio 3")
        a("buffer_store_dwordx4 v[140:143], v7, s[48:51], s44 offen sc1\nbuffer_store_dwordx4 v[144:147], v127, s[48:51], s44 offen sc1")
    ustores()
    lo = f"s_setprio {OPT['pb1']}"
    a("global_load_dwordx2 v[156:157], v23, s[36:37]")
    a(lo)
    for i in range(6): a(f"v_lshlrev_b32 v{16+i}, v9, v{16+i}\nv_and_b32 v{16+i}, s54, v{16+i}")
    a(f"""
    v_cvt_pk_bf16_f32 v22, v22, v22
    v_lshlrev_b32 v22, 16, v22
    v_mul_f32 v16, v16, v22
    v_mul_f32 v17, v17, v22
    v_mul_f32 v18, v18, v22
    v_mul_f32 v19, v19, v22
    v_mul_f32 v24, {f2u(LOG2E):#x}, v16
    v_mul_f32 v27, 0.15915494, v17
    v_mul_f32 v25, 0x41000000, v24
    v_mul_f32 v26, 0x43000000, v24
    v_mul_f32 v28, 0x41000000, v27
    v_mul_f32 v29, 0x43000000, v27
    v_fract_f32 v27, v27
    v_fract_f32 v28, v28
    v_fract_f32 v29, v29
    v_exp_f32 v24, v24
    v_cos_f32 v82, v27
    v_sin_f32 v83, v27
    v_exp_f32 v25, v25
    v_cos_f32 v96, v28
    v_sin_f32 v97, v28
    v_exp_f32 v26, v26
    v_cos_f32 v98, v29
    v_sin_f32 v99, v29
    v_mul_f32 v100, v20, v18
    v_fma_f32 v100, -v21, v19, v100
    v_mul_f32 v101, v20, v19
    v_fma_f32 v101, -v21, v18, -v101
    v_mul_f32 v82, v82, v24
    v_mul_f32 v83, v83, v24
    v_mul_f32 v96, v96, v25
    v_mul_f32 v97, -v97, v25
    v_mul_f32 v98, v98, v26
    v_mul_f32 v99, v99, v26
    v_mov_b32 v112, 0x3f80
    ds_write_b32 v63, v112 offset:{16*FR}
    """)
    tmp = [0]
    def put(src, row):
        t = 113 + tmp[0] % 7; tmp[0] += 1
        return [f"v_cvt_pk_bf16_f32 v{t}, v{src}, v{src+1}", f"ds_write_b32 v63, v{t} offset:{row*FR}"]
    W = lambda j: 80 + 2*j
    cA = put(W(1), 17)
    for j in range(2, 8): cA += cmul(W(j), W(j//2), W(j - j//2)) + put(W(j), 16 + j)
    cB = put(100, 0)
    for m in range(1, 16): cB += cmul(100 + 2*(m & 1), 100 + 2*((m-1) & 1), 96) + put(100 + 2*(m & 1), m)
    def hrow(i):
        if i == 1: return 24, [(j, 24 + j) for j in range(1, 8)]
        if i < 4: return 32 + 4*(i-2), [(2*j, 32 + 4*(i-2) + j) for j in range(1, 4)]
        if i < 8: return 40 + 2*(i-4), [(4, 41 + 2*(i-4))]
        return 48 + i - 8, []
    cC = []; pc = 0
    for i in range(1, 17):
        h = 98 if i == 1 else 104 + 2*(i & 1)
        if i > 1: cC += cmul(h, 98 if i == 2 else 104 + 2*((i-1) & 1), 98)
        row, prods = hrow(i)
        cC += put(h, row)
        for j, rw in prods:
            d = 108 + 2*(pc & 1); pc += 1
            cC += cmul(d, h, W(j)) + put(d, rw)
    main = cA + cC
    seq = interleave(main, cB, 2)
    cur = {}; k = 0; out = []
    for t in seq:
        m = re.match(r"v_cvt_pk_bf16_f32 v(\d+), v(\d+)", t)
        if m:
            n = 113 + k % 7; k += 1; cur[(m.group(1), t in cB)] = n
            t = t.replace(f"f32 v{m.group(1)},", f"f32 v{n},", 1)
        m = re.match(r"ds_write_b32 v63, v(\d+) offset:(\d+)", t)
        if m: t = f"ds_write_b32 v63, v{cur[(m.group(1), int(m.group(2)) < 16*FR)]} offset:{m.group(2)}"
        out.append(t)
    for t in out: a(t)
    stamp(a, 2)
    a("s_setprio 3\ns_waitcnt vmcnt(0)")
    tagcheck(a, 156, 23, 36, "b")
    wflag(a, 55)
    for t in range(2):
        for k in range(2): a(f"ds_read_b64_tr_b16 v[{148+4*t+2*k}:{149+4*t+2*k}], v8 offset:{1024*k+64*t}")
    a(lo)
    a("s_waitcnt lgkmcnt(0)\ns_barrier")
    stamp(a, 3)
    if OPT.get("x3"): a("s_endpgm")
    for s in range(8):
        o = (s >> 2)*FW + (s & 3)*64
        a(f"ds_read_b128 v[{160+12*s}:{163+12*s}], v64 offset:{o}")
        a(f"ds_read_b128 v[{164+12*s}:{167+12*s}], v65 offset:{o+16*FR}")
        a(f"ds_read_b128 v[{168+12*s}:{171+12*s}], v66 offset:{o+48*FR}")
    a(f"""
    s_cmp_ge_u32 s10, {KB}
    s_cbranch_scc1 Lb_nowd
    s_setprio 3
    buffer_store_dwordx4 v[148:151], v10, s[48:51], s45 offen sc1
    buffer_store_dwordx4 v[152:155], v10, s[48:51], s46 offen sc1
    {lo}
Lb_nowd:
    """)
    for s in range(8):
        b = 160 + 12*s
        a(f"s_waitcnt lgkmcnt({min(15, 3*(7-s))})")
        a(f"v_mfma_f32_16x16x32_bf16 v[68:71], v[{b}:{b+3}], v[{b+4}:{b+7}], {'v[68:71]' if s else 0}")
        a(f"v_mfma_f32_16x16x32_bf16 v[72:75], v[{b}:{b+3}], v[{b+8}:{b+11}], {'v[72:75]' if s else 0}")
    for i in range(4): a(f"ds_write_b32 v60, v{68+i} offset:{32*i}\nds_write_b32 v62, v{72+i} offset:{32*i}")
    def uload():
        a("s_setprio 3\ns_waitcnt vmcnt(0)")
        wflag(a, 11)
        a(f"""
        s_waitcnt lgkmcnt(0)
        s_mov_b32 s58, s60
        s_mov_b32 s59, s60
        s_add_u32 s15, s14, 64
        s_mov_b32 s62, {OPT['sp']}
Lse:
        s_load_dwordx16 s[16:31], s[48:49], s14 glc
        s_load_dwordx16 s[32:47], s[48:49], s15 glc
        s_waitcnt lgkmcnt(0)
        """)
        for i in range(16): a(f"s_xor_b64 s[{16+2*i}:{17+2*i}], s[{16+2*i}:{17+2*i}], s[58:59]")
        for st in (2, 4, 8, 16):
            for i in range(16, 48, 2*st): a(f"s_or_b64 s[{i}:{i+1}], s[{i}:{i+1}], s[{i+st}:{i+st+1}]")
        a("s_cbranch_scc0 Lpoll_e_ok\ns_sleep 2\ns_sub_u32 s62, s62, 1\ns_cbranch_scc0 Lse")
        poll(a, 156, 126, "e", -1, OPT['sl2'], 1)
        a(f"""
        s_setprio 3
        s_and_b32 s30, s8, 7
        s_lshl_b32 s22, s30, 9
        s_mul_i32 s23, s3, 88
        s_add_u32 s22, s22, s23
        s_add_u32 s22, s22, {FC}
        s_load_dwordx2 s[20:21], s[0:1], 112
        """)
        a(f"""
        s_lshl_b32 s46, s4, 13
        s_add_u32 s44, s46, {UT}
        s_add_u32 s45, s46, {UT+4096}
        buffer_load_dwordx4 v[56:59], v3, s[48:51], s44 offen
        buffer_load_dwordx4 v[100:103], v3, s[48:51], s45 offen
        """)
    a("v_lshlrev_b32 v3, 4, v0")
    a("s_waitcnt lgkmcnt(0)\ns_barrier")
    stamp(a, 4)
    for jj in range(11): a(f"ds_read2st64_b32 v[{160+2*jj}:{161+2*jj}], v{128+jj} offset0:0 offset1:{TS//256}")
    a(f"""
    ds_write_b128 v123, v[52:55] offset:{C0}
    v_cmp_eq_u32 vcc, 255, v0
    s_waitcnt lgkmcnt(1)
    """)
    for dd in range(2):
        b = 16 + 8*dd; q = 192 + 16*dd
        for p in range(6): a(f"v_cvt_pk_bf16_f32 v{b+p}, v{160+4*p+dd}, v{160+min(4*p+2, 20)+dd}")
        a(f"v_cndmask_b32 v{b+4}, v{b+4}, v52, vcc\nv_cndmask_b32 v{b+5}, v{b+5}, v52, vcc")
        a(f"ds_write_b128 v3, v[{b}:{b+3}] offset:{C0+dd*DSZ}")
        for i in range(4): a(f"v_alignbit_b32 v{q+4+i}, v{b+i+1}, v{b+i}, 16")
        for i in range(4): a(f"v_mov_b32 v{q+8+i}, v{b+i+1}")
        for i in range(4): a(f"v_alignbit_b32 v{q+12+i}, v{b+i+2}, v{b+i+1}, 16")
        for sg in range(1, 4): a(f"ds_write_b128 v3, v[{q+4*sg}:{q+3+4*sg}] offset:{C0+dd*DSZ+sg*CP}")
        if OPT["dbg"]: a(f"s_lshl_b32 s59, s4, 13\ns_add_u32 s59, s59, {KR+4096*dd}\nbuffer_store_dwordx4 v[{b}:{b+3}], v3, s[48:51], s59 offen")
    if OPT.get("x5"): a("s_endpgm")
    uload()
    stamp(a, 5)
    a(f"""
    v_mov_b32 v10, v120
    v_mov_b32 v11, v121
    v_mov_b32 v12, v122
    s_waitcnt vmcnt(0)
    ds_write_b128 v3, v[56:59] offset:{C0+4*CP+512}
    ds_write_b128 v3, v[100:103] offset:{C0+DSZ+4*CP+512}
    """)
    a("s_waitcnt lgkmcnt(0)\ns_barrier")
    stamp(a, 6)
    a(f"s_setprio {OPT['pb2']}")
    if OPT.get("noc"): a("s_endpgm")
    conv(a)
    gemm2(a)

def rolec(a):
    a("""
    s_load_dwordx2 s[16:17], s[0:1], 0
    s_load_dwordx4 s[32:35], s[0:1], 96
    s_load_dwordx4 s[36:39], s[0:1], 120
    v_lshrrev_b32 v1, 6, v0
    v_and_b32 v2, 63, v0
    v_readfirstlane_b32 s3, v1
    s_sub_u32 s4, s2, 496
    s_lshl_b32 s4, s4, 2
    s_add_u32 s4, s4, s3
    v_lshlrev_b32 v10, 4, v2
    v_mov_b32 v23, 0
    s_mov_b32 s54, 0xffff0000
    s_waitcnt lgkmcnt(0)
    """)
    srd(a, 48, 38, WS_SZ)
    a(f"""
    s_lshl_b32 s13, s4, 15
    v_lshlrev_b32 v11, 7, v2
    v_add_u32 v12, s13, v11
    v_add_u32 v11, s13, v10
    """)
    a("global_load_dwordx4 v[48:51], v10, s[34:35]")
    for i in range(4): a(f"global_load_dword v{26+i}, v12, s[16:17]\nv_add_u32 v12, 0x2000, v12")
    for r in range(4): a(f"global_load_dwordx4 v[{80+4*r}:{83+4*r}], v11, s[16:17] offset:{1024*r}")
    for i in range(4): a(f"v_lshlrev_b32 v{52+2*i}, 16, v{48+i}\nv_and_b32 v{53+2*i}, s54, v{48+i}") if False else None
    a("s_waitcnt vmcnt(0)")
    for i in range(4): a(f"v_lshlrev_b32 v{52+2*i}, 16, v{48+i}\nv_and_b32 v{53+2*i}, s54, v{48+i}")
    a(f"s_lshl_b32 s15, s4, 7\ns_add_u32 s15, s15, {G_OFF}\ns_mov_b64 s[20:21], 0x1111\nv_mov_b32 v21, 0\ns_mov_b32 s18, 8\nLc_loop:\ns_waitcnt vmcnt(0)")
    for r in range(16): a(f"v_mov_b32 v{64+r}, v{80+r}")
    a("v_add_u32 v11, 0x1000, v11\ns_cmp_eq_u32 s18, 1\ns_cbranch_scc1 Lc_nold")
    for r in range(4): a(f"global_load_dwordx4 v[{80+4*r}:{83+4*r}], v11, s[16:17] offset:{1024*r}")
    a("Lc_nold:")
    for r in range(4): a(f"v_mov_b32 v{32+r}, 0")
    for i in range(4):
        T = lambda r: 36 + 2*r
        for r in range(4): a(f"v_lshlrev_b32 v{T(r)}, 16, v{64+4*r+i}\nv_and_b32 v{T(r)+1}, s54, v{64+4*r+i}")
        for r in range(4): a(f"v_pk_mul_f32 v[{T(r)}:{T(r)+1}], v[{T(r)}:{T(r)+1}], v[{52+2*i}:{53+2*i}]")
        for r in range(4): a(f"v_cvt_pk_bf16_f32 v{T(r)}, v{T(r)}, v{T(r)+1}")
        for r in range(4): a(f"v_and_b32 v{T(r)+1}, s54, v{T(r)}\nv_lshlrev_b32 v{T(r)}, 16, v{T(r)}")
        for r in range(4): a(f"v_add_f32 v{32+r}, v{32+r}, v{T(r)+1}")
        for r in range(4): a(f"v_add_f32 v{32+r}, v{32+r}, v{T(r)}")
    for sh in (8, 4, 2, 1):
        for r in range(4): a(f"v_add_f32_dpp v{32+r}, v{32+r}, v{32+r} row_ror:{sh} {DPP}")
    for r in range(1, 4): a(f"v_mov_b32_dpp v32, v{32+r} quad_perm:[0,1,2,3] row_mask:0xf bank_mask:{1<<r:#x}")
    a(f"""
    v_mov_b32 v33, v32
    v_permlane16_swap_b32 v32, v33
    v_add_f32 v32, v32, v33
    v_mov_b32 v33, v32
    v_permlane32_swap_b32 v32, v33
    s_mov_b64 exec, s[20:21]
    v_add_f32 v21, v32, v33
    s_mov_b64 exec, -1
    s_lshl_b64 s[20:21], s[20:21], 16
    s_cselect_b64 s[20:21], s[20:21], 0x2222
    s_sub_u32 s18, s18, 1
    s_cmp_lg_u32 s18, 0
    s_cbranch_scc1 Lc_loop
    v_and_b32 v20, 60, v2
    v_and_b32 v22, 1, v2
    v_lshl_add_u32 v20, v22, 6, v20
    v_cvt_pk_bf16_f32 v32, v21, v21
    v_lshlrev_b32 v32, 16, v32
    v_mul_f32 v32, {f2u(-LOG2E):#x}, v32
    v_exp_f32 v32, v32
    v_add_f32 v32, 1.0, v32
    v_rcp_f32 v32, v32
    v_cvt_pk_bf16_f32 v32, v32, v32
    v_lshlrev_b32 v32, 16, v32
    s_mov_b32 exec_lo, 0x33333333
    s_mov_b32 exec_hi, 0x33333333
    buffer_store_dword v32, v20, s[48:51], s15 offen sc1
    global_load_dwordx2 v[24:25], v23, s[36:37] sc1
    s_waitcnt vmcnt(0)
    """)
    tagcheck(a, 24, 23, 36, "c")
    a(f"""
    s_lshl_b32 s14, s4, 3
    s_add_u32 s14, s14, {FG}
    s_mov_b64 exec, 1
    buffer_store_dwordx2 v[24:25], v23, s[48:51], s14 offen sc1
    s_endpgm
    """)
def gemm1(a):
    WB = 32768
    stamp(a, 0)
    a(f"s_setprio {OPT['pa0']}")
    a("""
    s_load_dwordx2 s[16:17], s[0:1], 0
    s_load_dwordx4 s[20:23], s[0:1], 80
    s_load_dwordx4 s[24:27], s[0:1], 120
    v_lshrrev_b32 v56, 6, v0
    v_and_b32 v57, 63, v0
    v_readfirstlane_b32 s3, v56
    s_and_b32 s4, s2, 7
    s_sub_u32 s5, s2, 256
    s_lshr_b32 s5, s5, 3
    """)
    if OPT["map"] == 0: a("""
    s_mul_i32 s4, s4, 30
    s_add_u32 s4, s4, s5
    s_cmp_ge_u32 s4, 120
    s_cselect_b32 s5, 8, 0
    s_cselect_b32 s6, 120, 0
    s_sub_u32 s4, s4, s6
    s_lshr_b32 s6, s4, 3
    s_and_b32 s4, s4, 7
    s_add_u32 s5, s5, s4
    """)
    else: a("""
    s_cmp_ge_u32 s5, 15
    s_cselect_b32 s6, 15, 0
    s_cselect_b32 s9, 1, 0
    s_sub_u32 s6, s5, s6
    s_lshl_b32 s4, s4, 1
    s_add_u32 s5, s9, s4
    """)
    a("""
    s_lshr_b32 s7, s3, 1
    s_and_b32 s8, s3, 1
    """)
    a("""
    s_lshl_b32 s9, s5, 17
    s_lshl_b32 s10, s3, 15
    s_add_u32 s9, s9, s10
    v_lshrrev_b32 v58, 3, v57
    v_lshlrev_b32 v58, 10, v58
    v_add_u32 v58, s9, v58
    v_lshrrev_b32 v59, 4, v57
    v_and_b32 v60, 7, v57
    v_xor_b32 v61, v60, v59
    v_lshl_add_u32 v11, v61, 4, v58
    v_xor_b32 v61, 4, v61
    v_lshl_add_u32 v12, v61, 4, v58
    v_add_u32 v12, 0x2000, v12
    v_add_u32 v13, 0x4000, v11
    v_add_u32 v14, 0x4000, v12
    s_mul_i32 s9, s8, 192
    s_mul_i32 s10, s6, 192
    s_lshl_b32 s11, s7, 1
    """)
    for qq in range(3):
        a(f"""
        v_add_u32 v58, s9, v57
        v_add_u32 v58, {64*qq}, v58
        v_mul_u32_u24 v60, 43691, v58
        v_lshrrev_b32 v60, 19, v60
        v_mul_u32_u24 v61, 12, v60
        v_sub_u32 v61, v58, v61
        v_xor_b32 v61, s11, v61
        v_mul_u32_u24 v60, 2752, v60
        v_lshl_add_u32 v60, v61, 4, v60
        v_add_u32 v{8+qq}, s10, v60
        """)
    a("s_waitcnt lgkmcnt(0)")
    srd(a, 28, 16, 2048*1024)
    a("s_cmp_eq_u32 s7, 0\ns_cselect_b32 s32, s20, s22\ns_cselect_b32 s33, s21, s23\ns_mov_b32 s34, 1409024\ns_mov_b32 s35, 0x00020000")
    srd(a, 36, 26, WS_SZ)
    a(f"""
    s_lshl_b32 s12, s3, 12
    s_mul_i32 s13, s3, 3072
    s_add_u32 s13, s13, {WB}
    s_mul_i32 s14, s5, {OPT['rr']}
    s_mul_i32 s15, s6, {OPT['rc']}
    s_add_u32 s14, s14, s15
    s_and_b32 s14, s14, 7
    s_mul_i32 s15, s14, {64*2752}
    s_lshl_b32 s14, s14, 7
    """)
    def dma_x(slot):
        L = []
        for qq in range(4):
            L.append(f"s_add_u32 m0, s12, {slot*16384+qq*1024}\nbuffer_load_dwordx4 v{11+qq}, s[28:31], s14 offen lds")
        L[-1] += "\ns_add_u32 s14, s14, 128\ns_and_b32 s14, s14, 1023"
        return L
    def dma_w(slot):
        L = []
        for qq in range(3):
            L.append(f"s_add_u32 m0, s13, {slot*12288+qq*1024}\nbuffer_load_dwordx4 v{8+qq}, s[32:35], s15 offen lds")
        L[-1] += f"\ns_add_u32 s15, s15, {32*2752}\ns_cmp_eq_u32 s15, {512*2752}\ns_cselect_b32 s15, 0, s15"
        return L
    if OPT["pf"] == 1:
        a("""
        s_and_b32 s9, s5, 7
        s_mul_i32 s9, s9, 176128
        s_mul_i32 s10, s6, 192
        s_add_u32 s9, s9, s10
        s_lshl_b32 s10, s8, 7
        s_add_u32 s9, s9, s10
        v_mul_u32_u24 v58, 2752, v57
        buffer_load_dword v160, v58, s[32:35], s9 offen
        s_and_b32 s9, s6, 3
        s_lshl_b32 s9, s9, 8
        s_lshl_b32 s10, s7, 7
        s_add_u32 s9, s9, s10
        s_lshl_b32 s10, s5, 17
        s_add_u32 s9, s9, s10
        v_and_b32 v58, 127, v0
        v_lshlrev_b32 v58, 10, v58
        buffer_load_dword v161, v58, s[28:31], s9 offen
        """)
    if OPT.get("g1twice"): a("s_mov_b32 s60, 2\nLg1_tw:\ns_barrier\ns_mov_b32 s14, 0\ns_mov_b32 s15, 0")
    for t in dma_x(0) + dma_w(0): a(t)
    for t in dma_w(1) + dma_w(2) + dma_x(1) + dma_w(3): a(t)
    a(f"""
    v_and_b32 v58, 31, v57
    v_lshrrev_b32 v59, 5, v57
    v_lshrrev_b32 v60, 1, v58
    v_and_b32 v60, 7, v60
    v_xor_b32 v60, v60, v59
    s_lshl_b32 s9, s7, 13
    v_lshlrev_b32 v58, 7, v58
    v_add_u32 v58, s9, v58
    """)
    for ks in range(4): a(f"v_xor_b32 v61, {2*ks}, v60\nv_lshl_add_u32 v{4+ks}, v61, 4, v58")
    a(f"""
    v_bfe_u32 v58, v57, 4, 1
    v_bfe_u32 v60, v57, 2, 2
    v_lshl_add_u32 v60, v59, 3, v60
    v_mul_u32_u24 v60, 192, v60
    v_mul_u32_u24 v61, 6144, v58
    v_add_u32 v60, v60, v61
    v_and_b32 v61, 3, v57
    v_lshl_add_u32 v60, v61, 3, v60
    v_add_u32 v60, {WB}, v60
    s_mul_i32 s9, s8, 3
    """)
    for tt in range(3):
        a(f"s_add_u32 s10, s9, {tt}\nv_xor_b32 v61, s10, v58\nv_lshl_add_u32 v{1+tt}, v61, 5, v60")
    a("v_lshlrev_b32 v15, 4, v57")
    for r in range(64, 160): a(f"v_mov_b32 v{r}, 0")
    F = [(16, 28), (36, 48)]
    def reads(f, s, ks):
        wb, xb = F[f]; L = []
        xo = ((s >> 1) & 1) * 16384; ks4 = (s & 1) * 2 + ks
        wo = (s & 3) * 12288 + ks * 3072
        L.append(f"ds_read_b128 v[{xb}:{xb+3}], v{4+ks4} offset:{xo}")
        for tt in range(3):
            L.append(f"ds_read_b64_tr_b16 v[{wb+4*tt}:{wb+4*tt+1}], v{1+tt} offset:{wo}")
            L.append(f"ds_read_b64_tr_b16 v[{wb+4*tt+2}:{wb+4*tt+3}], v{1+tt} offset:{wo+768}")
        L.append(f"ds_read_b128 v[{xb+4}:{xb+7}], v{4+ks4} offset:{xo+4096}")
        return L
    def mfmas(f):
        wb, xb = F[f]; L = []
        for mt in range(2):
            for tt in range(3):
                c = 64 + 16*(2*tt+mt)
                L.append(f"v_mfma_f32_32x32x16_bf16 v[{c}:{c+15}], v[{wb+4*tt}:{wb+4*tt+3}], v[{xb+4*mt}:{xb+4*mt+3}], v[{c}:{c+15}]")
        if OPT.get("g1nomfma"): L = ["s_nop 0"]*6
        return L
    stamp(a, 1)
    a(f"s_setprio {OPT['pa1']}")
    a("s_waitcnt vmcnt(13)\ns_barrier")
    stamp(a, 2)
    for t in reads(0, 0, 0): a(t)
    def stage(s, dma, vm, last=False):
        m = mfmas(0); r = reads(1, s, 1)
        a("s_waitcnt lgkmcnt(0)")
        for t in [m[0]] + r[0:3] + [m[1]] + r[3:6] + [m[2]] + r[6:8] + m[3:]: a(t)
        if last:
            a("s_waitcnt lgkmcnt(0)")
            for t in mfmas(1): a(t)
            return
        a(f"s_waitcnt lgkmcnt(0) vmcnt({vm})\ns_barrier")
        m = mfmas(1); r = reads(0, s+1, 0)
        d = []
        if dma and not OPT.get("g1nodma"):
            if s & 1: d += dma_x((s >> 1) & 1)
            d += dma_w(s & 3)
        seq = [m[0]] + r[0:3] + [m[1]] + r[3:6] + [m[2]] + r[6:8] + d[0:1] + [m[3]] + d[1:3] + [m[4]] + d[3:5] + [m[5]] + d[5:]
        for t in seq: a(t)
    a("s_mov_b32 s40, 3\nLg1_loop:")
    for s in range(4): stage(s, True, 6 if s & 1 else 10)
    a("s_sub_u32 s40, s40, 1\ns_cmp_lg_u32 s40, 0\ns_cbranch_scc1 Lg1_loop")
    stamp(a, 3)
    a("v_mov_b32 v162, 0\nglobal_load_dwordx2 v[160:161], v162, s[24:25]")
    stage(12, False, 11); stage(13, False, 4); stage(14, False, 1); stage(15, False, 0, last=True)
    if OPT.get("g1twice"): a("v_and_b32 v57, 63, v0\ns_nop 15\ns_sub_u32 s60, s60, 1\ns_cmp_lg_u32 s60, 0\ns_cbranch_scc1 Lg1_tw")
    stamp(a, 4)
    c1 = -2*0.7978845608028654*LOG2E; c2 = c1*0.044715
    a(f"""
    v_mov_b32 v56, {f2u(c1):#x}
    v_mov_b32 v57, {f2u(c1):#x}
    v_mov_b32 v58, 1.0
    v_mov_b32 v59, 1.0
    s_mov_b32 s42, {f2u(c2):#x}
    s_mov_b32 s43, {f2u(c2):#x}
    s_lshl_b32 s9, s5, 2
    s_lshl_b32 s10, s7, 1
    s_add_u32 s9, s9, s10
    s_mul_i32 s9, s9, {KB}
    s_mul_i32 s10, s6, 6
    s_mul_i32 s11, s8, 3
    s_add_u32 s10, s10, s11
    s_add_u32 s9, s9, s10
    s_lshl_b32 s9, s9, 10
    s_add_u32 s11, s9, {KB*1024}
    """)
    for tt in range(3):
        a(f"s_cmp_ge_u32 s10, {KB-tt}\ns_cbranch_scc1 Lg1_done")
        for mt in range(2):
            c = 64 + 16*(2*tt+mt); q = 16 + 8*mt; o = 32 + 4*((2*tt+mt) % 4)
            P = lambda b, p: f"v[{b+2*p}:{b+2*p+1}]"
            for p in range(4): a(f"v_pk_mul_f32 {P(q,p)}, {P(c,p)}, {P(c,p)}")
            for p in range(4): a(f"v_pk_fma_f32 {P(q,p)}, {P(q,p)}, s[42:43], v[56:57]")
            for p in range(4): a(f"v_pk_mul_f32 {P(q,p)}, {P(q,p)}, {P(c,p)}")
            for i in range(8): a(f"v_exp_f32 v{q+i}, v{q+i}")
            for p in range(4): a(f"v_pk_mul_f32 {P(c,p)}, {P(c,p)}, {P(c+8,p)}")
            for p in range(4): a(f"v_pk_add_f32 {P(q,p)}, {P(q,p)}, v[58:59]")
            for i in range(8): a(f"v_rcp_f32 v{q+i}, v{q+i}")
            for p in range(4): a(f"v_pk_mul_f32 {P(c,p)}, {P(c,p)}, {P(q,p)}")
            for p in range(4): a(f"v_cvt_pk_bf16_f32 v{o+p}, v{c+2*p}, v{c+2*p+1}")
            a(f"buffer_store_dwordx4 v[{o}:{o+3}], v15, s[36:39], s{9 if mt == 0 else 11} offen offset:{tt*1024} sc1")
    a("Lg1_done:")
    stamp(a, 5)
    a(f"""
    s_lshl_b32 s9, s5, 4
    s_add_u32 s9, s9, s6
    s_lshl_b32 s9, s9, 3
    s_add_u32 s9, s9, {FH}
    s_waitcnt vmcnt(0)
    s_barrier
    """)
    stamp(a, 6)
    a("s_cmp_lg_u32 s3, 0\ns_cbranch_scc1 Lg1_end")
    tagcheck(a, 160, 162, 24, "g1")
    a("s_mov_b64 exec, 1\nbuffer_store_dwordx2 v[160:161], v162, s[36:39], s9 offen sc1")
    a(f"s_lshl_b32 s9, s2, 7\ns_add_u32 s9, s9, {FWF-256*128}\nbuffer_store_dword v160, v162, s[36:39], s9 offen sc1\nLg1_end:")
    endp(a, 0, 36, 7)

def kd(name, vgpr=256):
    return f""".p2align 6
.amdhsa_kernel {name}
  .amdhsa_next_free_vgpr {vgpr}
  .amdhsa_next_free_sgpr 100
  .amdhsa_accum_offset {vgpr}
  .amdhsa_group_segment_fixed_size 0
  .amdhsa_kernarg_size 136
  .amdhsa_user_sgpr_count 2
  .amdhsa_user_sgpr_kernarg_segment_ptr 1
  .amdhsa_system_sgpr_workgroup_id_x 1
.end_amdhsa_kernel
"""
def head(a, name):
    a.raw(f".globl {name}\n.p2align 8\n.type {name},@function"); a.label(name)

def conv(a):
    S = [64, 128]
    def reads(st, qi):
        L = []; b = S[st]
        for p in range(8):
            L.append(f"ds_read_b128 v[{b+32+4*p}:{b+35+4*p}], v11 offset:{512*p+64*(3-qi)}")
            L.append(f"ds_read_b64 v[{b+4*p}:{b+4*p+1}], v10 offset:{512*(7-p)+64*(3-qi)}")
            L.append(f"ds_read_b64 v[{b+4*p+2}:{b+4*p+3}], v10 offset:{512*(7-p)+64*(3-qi)+8}")
        return L
    def mf(qi):
        L = []; b = S[qi & 1]
        for p in range(8):
            for I in range(p, 8):
                c = 192 + 4*I; P = I - p
                L.append(f"v_mfma_f32_16x16x32_bf16 v[{c}:{c+3}], v[{b+4*p}:{b+4*p+3}], v[{b+32+4*P}:{b+35+4*P}], " + ("0" if qi == 0 and p == 0 else f"v[{c}:{c+3}]"))
        return L
    for t in reads(0, 0): a(t)
    g2_addr(a)
    a(f"v_lshlrev_b32 v13, 4, v2\ns_lshl_b32 s31, s3, 12")
    def wload(st):
        L = [f"buffer_load_dwordx4 v[{WREG[st]+4*i}:{WREG[st]+4*i+3}], v13, s[48:51], s{24+i} offen offset:{1024*(st%4)}" for i in range(2)]
        if st % 4 == 3: L[-1] += "\ns_add_u32 s24, s24, 4096\ns_add_u32 s25, s25, 4096"
        return L
    def wdma(st):
        return [f"s_add_u32 m0, s31, {LOFF[st]+1024*i}\nbuffer_load_dwordx4 v13, s[48:51], s{32+i} offen lds\ns_add_u32 s{32+i}, s{32+i}, 1024" for i in range(2)]
    early = sum([wload(st) for st in range(9)], []) + wdma(WR) + wdma(WR+1)
    late = sum([wload(st) for st in range(9, WR)], [])
    a(f"""
    s_add_u32 s32, s24, {WR*1024}
    s_add_u32 s33, s25, {WR*1024}
    v_min_u32 v9, {NS-1}, v2
    v_lshl_add_u32 v9, v9, 2, s22
    s_add_u32 s22, s22, s48
    s_addc_u32 s23, s49, 0
    """)
    Q = OPT["wq"]
    allw = early + late
    for qi in range(4):
        a("s_waitcnt lgkmcnt(0)")
        if qi == Q - 1:
            for r, n, o in ((36, 8, 0), (16, 4, 32), (96, 4, 48), (44, 2, 64), (34, 2, 72), (56, 2, 80)):
                a(f"s_load_dwordx{n} s[{r}:{r+n-1}], s[22:23], {o}")
        if qi == Q:
            R = [36, 38, 40, 42, 16, 18, 96, 98, 44, 34, 56]
            for r in R: a(f"s_xor_b64 s[{r}:{r+1}], s[{r}:{r+1}], s[58:59]")
            for r in R[1:]: a(f"s_or_b64 s[36:37], s[36:37], s[{r}:{r+1}]")
            a("s_cbranch_scc0 Lpoll_w_ok")
            poll(a, 18, 9, "w", -1, OPT['sl2'], 1)
        nxt = reads((qi+1) & 1, qi+1) if qi < 3 else []
        if qi >= Q:
            n = 12 if qi < 3 else 99
            if qi < 3: n = min(n, len(allw) - len(late))
            nxt = nxt + allw[:n]; allw = allw[n:]
        for t in interleave(mf(qi), nxt, 1): a(t)
    stamp(a, 7)
    RB = C0 + 2*DSZ
    a(f"""
    s_lshl_b32 s14, s3, 12
    s_add_u32 s14, s14, {RB}
    v_add_u32 v14, s14, v13
    s_xor_b32 s15, s3, 1
    s_lshl_b32 s15, s15, 12
    s_add_u32 s15, s15, {RB}
    v_add_u32 v15, s15, v13
    s_lshl_b32 s13, s6, 11
    s_add_u32 s14, s12, s13
    s_add_u32 s14, s14, {4*CP+512}
    v_add_u32 v16, s14, v12
    s_nop 7
    s_cmp_eq_u32 s6, 0
    s_cbranch_scc1 Lc_lo
    """)
    for I in range(4): a(f"ds_write_b128 v14, v[{192+4*I}:{195+4*I}] offset:{1024*I}")
    for r in range(16): a(f"v_mov_b32 v{160+r}, v{208+r}")
    a("s_branch Lc_join\nLc_lo:")
    for I in range(4): a(f"ds_write_b128 v14, v[{208+4*I}:{211+4*I}] offset:{1024*I}")
    for r in range(16): a(f"v_mov_b32 v{160+r}, v{192+r}")
    a("Lc_join:")
    for I in range(4): a(f"ds_read_b64 v[{128+2*I}:{129+2*I}], v16 offset:{512*I}")
    a(f"""
    s_waitcnt lgkmcnt(0)
    s_barrier
    s_lshl_b32 s14, s5, 12
    s_add_u32 s14, s14, s46
    s_add_u32 s14, s14, s13
    s_add_u32 s14, s14, {AT}
    """)
    for I in range(4): a(f"ds_read_b128 v[{176+4*I}:{179+4*I}], v15 offset:{1024*I}")
    for I in range(4):
        for hh in range(2):
            u = 128 + 2*I + hh; f = 160 + 4*I + 2*hh
            a(f"v_lshlrev_b32 v136, 16, v{u}\nv_and_b32 v137, s54, v{u}\nv_fmac_f32 v{f}, v136, v5\nv_fmac_f32 v{f+1}, v137, v5")
    a("s_waitcnt lgkmcnt(0)")
    a("s_setprio 3")
    for r in range(0, 16, 2): a(f"v_pk_add_f32 v[{160+r}:{161+r}], v[{160+r}:{161+r}], v[{176+r}:{177+r}]")
    for I in range(4):
        a(f"v_cvt_pk_bf16_f32 v{192+2*I}, v{160+4*I}, v{161+4*I}\nv_cvt_pk_bf16_f32 v{193+2*I}, v{162+4*I}, v{163+4*I}")
        a(f"buffer_store_dwordx2 v[{192+2*I}:{193+2*I}], v12, s[48:51], s14 offen offset:{512*I} sc1")
    a(f"v_mov_b32 v3, v13\nv_add_u32 v11, s31, v13\ns_waitcnt vmcnt(0)\ns_barrier")
    flag(a, 0, "l")
    a(f"s_setprio {OPT['pb3']}\nv_mov_b32 v13, v3")
    stamp(a, 8)
    if OPT.get("now"): a("s_endpgm")
    a(f"s_mul_i32 s31, s3, {RS}")
    for st in range(WR+2, NS):
        for t in wdma(st): a(t)

NS = KB // 4; WR = 13; HD = 9; ATL = 73728; AC = 96; RS = 2048*(NS-WR-2)
WREG = [24, 32, 40, 48, 56, 224, 232, 240, 248, 64, 72, 80, 88]
HREG = [160 + 8*i for i in range(8)] + [16]
LOFF = {WR: 0, WR+1: 2048}
for _s in range(WR+2, NS): LOFF[_s] = 16384 + 2048*(_s-WR-2)
def g2_addr(a):
    a(f"""
    s_lshl_b32 s28, s9, 2
    s_lshr_b32 s29, s8, 3
    s_add_u32 s28, s28, s29
    s_lshl_b32 s10, s30, 1
    s_add_u32 s10, s10, s5
    s_lshl_b32 s11, s28, 1
    s_add_u32 s11, s11, s6
    s_mul_i32 s29, s3, {NS*1024}
    s_mul_i32 s24, s10, {KB*1024}
    s_xor_b32 s25, s10, 1
    s_mul_i32 s25, s25, {KB*1024}
    s_mul_i32 s26, s11, {KB*1024}
    s_xor_b32 s27, s11, 1
    s_mul_i32 s27, s27, {KB*1024}
    s_add_u32 s26, s26, s29
    s_add_u32 s27, s27, s29
    s_add_u32 s29, s29, {WDF}
    s_add_u32 s24, s24, s29
    s_add_u32 s25, s25, s29
    """)

def gemm2(a):
    a(f"""
    s_lshl_b32 s44, s11, 3
    s_add_u32 s44, s44, {FG}
    v_mov_b32 v4, s44
    s_lshl_b32 s44, s30, 8
    s_add_u32 s44, s44, {FL}
    v_lshl_add_u32 v9, v2, 3, s44
    v_cmp_gt_u32 vcc, 32, v2
    v_cndmask_b32 v9, v4, v9, vcc
    """)
    srd(a, 40, 20, 2048*1024)
    a(f"""
    s_lshl_b32 s32, s10, 17
    s_lshl_b32 s33, s11, 6
    s_add_u32 s32, s32, s33
    s_add_u32 s32, s32, {AT}
    s_add_u32 s33, s32, 65536
    v_lshrrev_b32 v4, 2, v2
    v_lshlrev_b32 v4, 12, v4
    v_and_b32 v5, 3, v2
    v_lshl_add_u32 v4, v5, 4, v4
    v_and_b32 v6, 31, v2
    v_lshlrev_b32 v7, 2, v6
    s_lshl_b32 s34, s11, 7
    s_add_u32 s34, s34, {G_OFF}
    s_lshl_b32 s35, s3, 11
    s_add_u32 s35, s35, {ATL}
    v_lshrrev_b32 v14, 5, v2
    v_bfe_u32 v15, v2, 2, 2
    v_lshl_add_u32 v15, v14, 2, v15
    v_lshlrev_b32 v15, 6, v15
    v_bfe_u32 v1, v2, 4, 1
    v_lshl_add_u32 v15, v1, 5, v15
    v_lshl_add_u32 v15, v5, 3, v15
    v_add_u32 v15, s35, v15
    v_lshlrev_b32 v6, 10, v6
    v_lshl_add_u32 v6, v14, 4, v6
    s_lshl_b32 s36, s11, 15
    s_lshl_b32 s37, s10, 6
    s_add_u32 s36, s36, s37
    s_lshr_b32 s44, s28, 1
    s_lshl_b32 s44, s44, 7
    s_add_u32 s44, s44, {FH}
    v_lshl_add_u32 v5, v2, 3, s44
    v_add_u32 v12, s31, v3
    """)
    stamp(a, 9)
    a("s_setprio 0")
    a("s_cmp_lg_u32 s3, 0\ns_cbranch_scc1 Lg2_w")
    a(f"""
    s_cmp_ge_u32 s2, 240
    s_cbranch_scc1 Lsp_ok
    s_lshl_b32 s44, s2, 7
    s_add_u32 s44, s44, {FWF}
    s_mov_b32 s62, {OPT['sp2']}
Lsp:
    s_load_dword s45, s[48:49], s44 glc
    s_waitcnt lgkmcnt(0)
    s_cmp_eq_u32 s45, s60
    s_cbranch_scc1 Lsp_ok
    s_sleep 2
    s_sub_u32 s62, s62, 1
    s_cbranch_scc0 Lsp
Lsp_ok:
    """)
    poll(a, 0, 5, "h", 0x7fff, OPT["sl"])
    a("Lg2_w:\ns_barrier")
    a("s_setprio 3")
    stamp(a, 10)
    def loads(st):
        L = []; b = HREG[st % HD]
        for i in range(2):
            L.append(f"buffer_load_dwordx4 v[{b+4*i}:{b+4*i+3}], v3, s[48:51], s{26+i} offen offset:{1024*(st%4)}")
        if st % 4 == 3: L[-1] += "\ns_add_u32 s26, s26, 4096\ns_add_u32 s27, s27, 4096"
        return L
    for st in range(HD):
        for t in loads(st): a(t)
    a("buffer_load_dwordx2 v[0:1], v9, s[48:51], 0 offen sc1")
    for st in range(NS):
        b = HREG[st % HD]; w = WREG[st % WR]
        a(f"s_waitcnt vmcnt({2*(min(st+HD, NS)-st-1) + (1 if st < HD else 3 if HD < st < 2*HD else 0)})" + (" lgkmcnt(0)" if st == WR else ""))
        for i in range(2):
            for j in range(2):
                c = AC + 16*(2*i+j)
                a(f"v_mfma_f32_32x32x16_bf16 v[{c}:{c+15}], v[{w+4*i}:{w+4*i+3}], v[{b+4*j}:{b+3+4*j}], " + ("0" if st == 0 else f"v[{c}:{c+15}]"))
        if st == HD:
            check(a, 0, 9, "l")
            a(f"""
            s_mov_b32 m0, s35
            buffer_load_dwordx4 v4, s[48:51], s32 offen lds
            s_add_u32 m0, s35, 1024
            buffer_load_dwordx4 v4, s[48:51], s33 offen lds
            buffer_load_dword v8, v7, s[48:51], s34 offen sc1
            """)
        if st + HD < NS:
            for t in loads(st + HD): a(t)
        if st + WR < NS:
            for i in range(2): a(f"ds_read_b128 v[{w+4*i}:{w+4*i+3}], v{11 if st < 2 else 12} offset:{LOFF[st+WR]+1024*i}")
    stamp(a, 11)
    a("v_sub_f32 v9, 1.0, v8\nv_cvt_pk_bf16_f32 v9, v9, v9\nv_lshlrev_b32 v9, 16, v9")
    for x in range(1, 4):
        a(f"s_xor_b32 s44, s3, {x}\ns_mul_i32 s44, s44, {RS}\ns_add_u32 s44, s44, {16384+(x-1)*4096}\nv_add_u32 v{x if x < 3 else 4}, s44, v3")
    for x in range(1, 4):
        for qd in range(4): a(f"ds_write_b128 v12, v[{AC+16*x+4*qd}:{AC+3+16*x+4*qd}] offset:{16384+(x-1)*4096+1024*qd}")
    for qd in range(4): a(f"ds_read_b64_tr_b16 v[{80+2*qd}:{81+2*qd}], v15 offset:{512*qd}")
    a("s_waitcnt lgkmcnt(0)\ns_barrier")
    for x in range(3):
        for qd in range(4): a(f"ds_read_b128 v[{160+16*x+4*qd}:{163+16*x+4*qd}], v{x+1 if x < 2 else 4} offset:{1024*qd}")
    for p in range(8):
        a(f"v_lshlrev_b32 v{24+2*p}, 16, v{80+p}\nv_and_b32 v{25+2*p}, s54, v{80+p}\nv_pk_mul_f32 v[{24+2*p}:{25+2*p}], v[{24+2*p}:{25+2*p}], v[8:9] op_sel_hi:[1,0]")
    for x in range(3):
        a(f"s_waitcnt lgkmcnt({8-4*x})")
        for r in range(0, 16, 2): a(f"v_pk_add_f32 v[{AC+r}:{AC+1+r}], v[{AC+r}:{AC+1+r}], v[{160+16*x+r}:{161+16*x+r}]")
    for p in range(8):
        a(f"v_pk_fma_f32 v[{24+2*p}:{25+2*p}], v[{AC+2*p}:{AC+1+2*p}], v[8:9], v[{24+2*p}:{25+2*p}] op_sel:[0,1,0] op_sel_hi:[1,1,1]")
    for p in range(8): a(f"v_cvt_pk_bf16_f32 v{88+p}, v{24+2*p}, v{25+2*p}")
    for pr in range(2):
        b = 88 + 4*pr
        a(f"v_permlane32_swap_b32 v{b}, v{b+2}\nv_permlane32_swap_b32 v{b+1}, v{b+3}")
        a(f"buffer_store_dwordx4 v[{b}:{b+3}], v6, s[40:43], s36 offen offset:{32*pr}")
    endp(a, 0, 48, 12)

def main(path):
    ref = open("gated_mix__ssm_conv_s4__geglu_ffn__prompt.s.ref").read().split("\n")
    hdr = [l for l in ref if l.startswith(";") and "@launch" not in l and "Override" not in l and "grid=ceil" not in l]
    L = ["; @launch kernel=k1_kernel grid=(512,1,1) block=(256,1,1) lds=81920"]
    a = Asm()
    head(a, "k1_kernel")
    a("s_cmp_ge_u32 s2, 256\ns_cbranch_scc1 Lk1_b")
    roleb(a)
    a("Lk1_b:\ns_cmp_ge_u32 s2, 496\ns_cbranch_scc1 Lk1_x")
    gemm1(a)
    a("Lk1_x:\ns_cmp_ge_u32 s2, 512\ns_cbranch_scc1 Lk1_y")
    rolec(a)
    a("Lk1_y:\ns_endpgm")
    out = "\n".join(hdr + L) + '\n.amdgcn_target "amdgcn-amd-amdhsa--gfx950"\n.text\n' + a.text()
    out += '.section .rodata,"a"\n' + kd("k1_kernel")
    open(path, "w").write(out)

if __name__ == "__main__":
    for kv in sys.argv[2:]:
        k, v = kv.split("="); OPT[k] = int(v)
    main(sys.argv[1])
```

```python
import sys, struct, re
from asmlib import Asm
def f2u(x): return struct.unpack("<I", struct.pack("<f", x))[0]
KB = 88
H_OFF = 0; WDF = 64*KB*1024; UT = WDF + 16*KB*1024; KR = UT + 0x200000; AT = KR + 0x200000; G_OFF = AT + 0x200000
FE = G_OFF + 0x2000; FWF = FE + 0x2000; FL = FWF + 0x8000; FH = FL + 0x800; FC = FH + 0x800; FG = FC + 0x1000
ST_OFF = G_OFF + 0x10000
WS_SZ = ST_OFF + 0x80000
DPP = "row_mask:0xf bank_mask:0xf"
LOG2E = 1.4426950408889634
OPT = dict(stamps=0, dbg=0, pf=0, sp=12, sp2=24, sx=1, sw=1, hc=0, hr=6, wq=2, ef=60, ost=0, rr=1, rc=2, map=0, pa0=2, pa1=1, pb0=3, sl2=8, pb1=3, pb2=0, pb3=0, sl=2)

def srd(a, d, b, n):
    a(f"s_mov_b32 s{d}, s{b}\ns_mov_b32 s{d+1}, s{b+1}\ns_mov_b32 s{d+2}, {n:#x}\ns_mov_b32 s{d+3}, 0x00020000")

def stamp(a, k):
    if OPT["stamps"]:
        a(f"s_memrealtime s[{70+2*k}:{71+2*k}]")
        if k == 0: a("s_memtime s[64:65]")
def endp(a, kern, srdw, n):
    if OPT["stamps"]:
        a(f"s_waitcnt vmcnt(0)\ns_memrealtime s[{70+2*n}:{71+2*n}]\ns_memtime s[66:67]\ns_mov_b64 exec, 1\ns_waitcnt lgkmcnt(0)")
        a(f"s_lshl_b32 s68, s2, 2\ns_add_u32 s68, s68, s3\ns_lshl_b32 s68, s68, 6\ns_add_u32 s68, s68, {ST_OFF+kern*0x40000}\nv_mov_b32 v1, 0")
        a(f"s_sub_u32 s66, s66, s64\nv_mov_b32 v2, s66\nbuffer_store_dword v2, v1, s[{srdw}:{srdw+3}], s68 offen offset:60")
        for k in range(n+1): a(f"v_mov_b32 v2, s{70+2*k}\nbuffer_store_dword v2, v1, s[{srdw}:{srdw+3}], s68 offen offset:{4*k}")
    a("s_endpgm")

def interleave(main, fill, every, start=0):
    out = []; fi = 0
    for i, m in enumerate(main):
        out.append(m)
        if i >= start and (i - start) % every == every - 1 and fi < len(fill): out.append(fill[fi]); fi += 1
    out += fill[fi:]
    return out

SPIN = 1 << 20
def tagcheck(a, v, vz, dbg, nm):
    a(f"""
    s_mov_b32 s62, {SPIN}
Ltag_{nm}:
    v_readfirstlane_b32 s60, v{v}
    v_readfirstlane_b32 s61, v{v+1}
    s_sub_u32 s62, s62, 1
    s_cbranch_scc1 Ltag_{nm}_ok
    s_cmp_lg_u32 s60, 0
    s_cbranch_scc1 Ltag_{nm}_ok
    s_sleep 2
    global_load_dwordx2 v[{v}:{v+1}], v{vz}, s[{dbg}:{dbg+1}] sc1
    s_waitcnt vmcnt(0)
    s_branch Ltag_{nm}
Ltag_{nm}_ok:
    """)
def poll(a, v, va, nm, mask, sl=4, w=2):
    a(f"""
    s_mov_b32 s62, {SPIN}
    s_mov_b64 exec, {mask}
    s_branch Lpoll_{nm}_in
Lpoll_{nm}:
    s_sleep {sl}
Lpoll_{nm}_in:
    {f'buffer_load_dwordx2 v[{v}:{v+1}]' if w == 2 else f'buffer_load_dword v{v}'}, v{va}, s[48:51], 0 offen sc1
    s_waitcnt vmcnt(0)
    {f'v_cmp_ne_u64 vcc, s[60:61], v[{v}:{v+1}]' if w == 2 else f'v_cmp_ne_u32 vcc, s60, v{v}'}
    s_sub_u32 s62, s62, 1
    s_cbranch_scc1 Lpoll_{nm}_ok
    s_nop 0
    s_cbranch_vccnz Lpoll_{nm}
Lpoll_{nm}_ok:
    s_mov_b64 exec, -1
    """)
def wflag(a, s):
    a(f"""
    v_mov_b32 v14, s60
    s_mov_b64 exec, 1
    buffer_store_dword v14, v23, s[48:51], s{s} offen sc1
    s_mov_b64 exec, -1
    """)
def check(a, v, va, nm):
    a(f"v_cmp_ne_u64 vcc, s[60:61], v[{v}:{v+1}]\ns_nop 1\ns_cbranch_vccz Lpoll_{nm}_ok")
    poll(a, v, va, nm, -1, OPT['sl2'])
def flag(a, off, nm):
    a(f"""
    s_cmp_lg_u32 s3, 0
    s_cbranch_scc1 Lfl_{nm}
    v_mov_b32 v14, s60
    v_mov_b32 v15, s61
    v_mov_b32 v13, s63
    s_mov_b64 exec, 1
    buffer_store_dwordx2 v[14:15], v13, s[48:51], 0 offen offset:{off} sc1
    s_mov_b64 exec, -1
Lfl_{nm}:
    """)

TS = 8960; C0 = 2*TS; FR = 272; FW = 57*FR
CP = 4160; DSZ = 4*CP + 4608
def cmul(D, X, Y):
    p = lambda r: f"v[{r}:{r+1}]"
    return [f"v_pk_mul_f32 {p(D)}, {p(X)}, {p(Y)} op_sel:[0,0] op_sel_hi:[0,1]",
            f"v_pk_fma_f32 {p(D)}, {p(X)}, {p(Y)}, {p(D)} op_sel:[1,1,0] op_sel_hi:[1,0,1] neg_lo:[1,0,0]"]

def roleb(a):
    stamp(a, 0)
    a(f"s_setprio {OPT['pb0']}")
    a("""
    s_load_dwordx16 s[16:31], s[0:1], 0
    s_load_dwordx2 s[32:33], s[0:1], 96
    s_load_dwordx4 s[36:39], s[0:1], 120
    s_load_dwordx2 s[56:57], s[0:1], 64
    s_memrealtime s[60:61]
    v_lshrrev_b32 v1, 6, v0
    v_and_b32 v2, 63, v0
    v_readfirstlane_b32 s3, v1
    s_lshr_b32 s8, s2, 3
    s_and_b32 s9, s2, 7
    s_lshl_b32 s4, s9, 5
    s_add_u32 s4, s4, s8
    s_lshl_b32 s63, s4, 3
    s_lshl_b32 s5, s4, 9
    v_lshrrev_b32 v3, 1, v0
    v_lshl_add_u32 v3, v3, 2, s5
    s_lshl_b32 s7, s4, 2
    s_lshr_b32 s5, s3, 1
    v_and_b32 v5, 31, v2
    v_lshrrev_b32 v6, 5, v2
    s_lshl_b32 s11, s8, 16
    s_lshl_b32 s12, s9, 7
    s_add_u32 s11, s11, s12
    s_lshl_b32 s10, s3, 5
    s_add_u32 s11, s11, s10
    s_add_u32 s11, s11, 4096
    v_and_b32 v124, 7, v2
    v_lshrrev_b32 v125, 3, v2
    v_lshlrev_b32 v7, 13, v124
    v_lshl_add_u32 v7, v125, 2, v7
    v_add_u32 v7, s11, v7
    s_lshl_b32 s13, s2, 2
    s_add_u32 s13, s13, s3
    s_lshl_b32 s10, s8, 2
    s_add_u32 s10, s10, s3
    s_lshl_b32 s40, s10, 14
    s_add_u32 s40, s40, s12
    v_lshlrev_b32 v8, 10, v125
    v_lshl_add_u32 v8, v124, 4, v8
    v_add_u32 v8, s40, v8
    v_add_u32 v9, 0x2000, v8
    v_lshlrev_b32 v10, 4, v2
    v_mov_b32 v23, 0
    s_waitcnt lgkmcnt(0)
    """)
    a(f"s_add_u32 s63, s63, {FL}")
    srd(a, 40, 32, 1376*1024)
    srd(a, 48, 38, WS_SZ)
    a("""
    s_cmp_lg_u32 s13, 0
    s_cbranch_scc1 Lb_notag
    s_or_b32 s60, s60, 1
    v_mov_b32 v14, s60
    v_mov_b32 v15, s61
    s_mov_b64 exec, 1
    global_store_dwordx2 v23, v[14:15], s[36:37] sc1
    s_mov_b64 exec, -1
Lb_notag:
    """)
    if OPT.get("nob"): a("s_endpgm")
    for i in range(8): a(f"global_load_dword v{32+i}, v7, s[16:17] offset:{(i-4)*1024}")
    for i in range(6): a(f"global_load_dword v{16+i}, v3, s[{18+2*i}:{19+2*i}]")
    a("""
    s_load_dword s58, s[30:31], s7
    s_load_dword s59, s[56:57], s7
    s_lshl_b32 s15, s3, 11
    s_mov_b32 m0, s15
    buffer_load_dwordx4 v8, s[40:43], 0 offen lds
    s_add_u32 m0, s15, 1024
    buffer_load_dwordx4 v9, s[40:43], 0 offen lds
    """)
    a(f"s_setprio {OPT['pb1']}")
    npf = 0
    a(f"""
    v_and_b32 v12, 15, v2
    v_and_b32 v13, 7, v12
    v_lshrrev_b32 v14, 3, v12
    v_lshl_add_u32 v60, v14, 7, v13
    v_lshrrev_b32 v14, 2, v12
    v_lshlrev_b32 v14, 7, v14
    v_and_b32 v15, 3, v12
    v_lshl_add_u32 v14, v15, 1, v14
    v_add_u32 v14, 0x100, v14
    v_lshrrev_b32 v15, 1, v13
    v_lshlrev_b32 v15, 7, v15
    v_and_b32 v61, 1, v12
    v_lshl_add_u32 v15, v61, 2, v15
    v_add_u32 v15, 0x200, v15
    v_cmp_gt_u32 vcc, 8, v12
    v_cndmask_b32 v61, v15, v14, vcc
    s_and_b32 s6, s3, 1
    s_cmp_eq_u32 s6, 0
    s_cselect_b64 vcc, -1, 0
    v_cndmask_b32 v60, v61, v60, vcc
    v_min_u32 v67, 8, v12
    v_lshlrev_b32 v62, 7, v67
    v_add_u32 v62, 0x400, v62
    v_lshrrev_b32 v13, 4, v2
    v_lshlrev_b32 v14, 5, v13
    v_add_u32 v14, v14, v6
    v_lshrrev_b32 v15, 6, v60
    v_add3_u32 v60, v60, v15, v14
    v_lshrrev_b32 v15, 6, v62
    v_add3_u32 v62, v62, v15, v14
    s_mul_i32 s44, s5, {TS}
    v_lshl_add_u32 v60, v60, 2, s44
    v_lshl_add_u32 v62, v62, 2, s44
    s_mul_i32 s44, s3, {FW}
    s_add_u32 s44, s44, {C0}
    v_lshl_add_u32 v63, v2, 2, s44
    s_mul_i32 s44, s5, {2*FW}
    s_add_u32 s44, s44, {C0}
    v_lshl_add_u32 v14, v13, 4, s44
    v_mul_u32_u24 v15, {FR}, v12
    v_add_u32 v64, v14, v15
    s_mul_i32 s44, s6, {16*FR}
    v_add_u32 v65, s44, v64
    v_mul_u32_u24 v15, {FR}, v67
    v_add_u32 v66, v14, v15
    s_mov_b32 s52, 0x05040100
    s_mov_b32 s53, 0x07060302
    s_mov_b32 s54, 0xffff0000
    """)
    a("v_lshlrev_b32 v14, 5, v0\nv_sub_u32 v14, 8188, v14")
    for jj in range(12): a(f"v_subrev_u32 v{128+jj}, {4*jj}, v14\nv_max_i32 v{128+jj}, 0, v{128+jj}\nv_cvt_f32_u32 v{128+jj}, v{128+jj}")
    for p in range(6):
        x = 128 + 2*p
        a(f"""
        v_cvt_pk_bf16_f32 v{x}, v{x}, v{x+1}
        v_and_b32 v{x+1}, s54, v{x}
        v_lshlrev_b32 v{x}, 16, v{x}
        v_cvt_u32_f32 v{x+1}, v{x+1}
        v_cvt_u32_f32 v{x}, v{x}
        v_lshrrev_b32 v14, 8, v{x+1}
        v_lshrrev_b32 v15, 8, v{x}
        v_lshl_add_u32 v{x+1}, v14, 2, v{x+1}
        v_lshl_add_u32 v{x}, v15, 2, v{x}
        """)
    a(f"""
    v_and_b32 v68, 15, v2
    v_lshrrev_b32 v69, 4, v2
    v_sub_u32 v70, 3, v68
    v_and_b32 v70, 3, v70
    v_sub_u32 v71, 2031, v68
    v_lshl_add_u32 v71, v69, 3, v71
    v_sub_u32 v71, v71, v70
    v_lshlrev_b32 v71, 1, v71
    v_mul_u32_u24 v70, {CP}, v70
    v_add_u32 v71, v71, v70
    s_mul_i32 s12, s5, {DSZ}
    s_add_u32 s12, s12, {C0}
    s_lshl_b32 s44, s6, 8
    s_sub_u32 s44, s12, s44
    s_sub_u32 s45, s44, {512*7+192}
    v_add_u32 v120, s45, v71
    v_lshlrev_b32 v70, 5, v68
    v_lshl_add_u32 v121, v69, 4, v70
    s_add_u32 s45, s44, {4*CP+480-192}
    v_add_u32 v121, s45, v121
    v_lshl_add_u32 v122, v69, 3, v70
    v_and_b32 v68, 31, v0
    v_lshlrev_b32 v123, 4, v68
    v_add_u32 v123, {4*CP}, v123
    v_bfe_u32 v70, v0, 5, 1
    v_mul_u32_u24 v70, {DSZ}, v70
    v_add_u32 v123, v123, v70
    v_and_b32 v70, 3, v0
    v_lshlrev_b32 v70, 4, v70
    v_bfe_u32 v71, v0, 2, 2
    v_mul_u32_u24 v71, {CP}, v71
    v_add_u32 v70, v70, v71
    v_bfe_u32 v71, v0, 4, 1
    v_mul_u32_u24 v71, {DSZ}, v71
    v_add_u32 v70, v70, v71
    v_add_u32 v70, 0x1000, v70
    v_cmp_gt_u32 vcc, 64, v0
    v_cndmask_b32 v123, v70, v123, vcc
    v_mov_b32 v52, 0
    v_mov_b32 v53, 0
    v_mov_b32 v54, 0
    v_mov_b32 v55, 0
    s_lshl_b32 s44, s9, 2
    s_lshr_b32 s45, s8, 3
    s_add_u32 s45, s45, s44
    s_lshl_b32 s45, s45, 7
    s_add_u32 s14, s45, {FE}
    v_lshl_add_u32 v126, v5, 2, s14
    s_add_u32 s55, s44, s3
    s_lshl_b32 s55, s55, 5
    s_add_u32 s55, s55, s8
    s_lshl_b32 s55, s55, 2
    s_add_u32 s55, s55, {FE}
    s_lshl_b32 s44, s9, 18
    s_lshl_b32 s45, s8, 7
    s_add_u32 s44, s44, s45
    s_lshl_b32 s45, s3, 16
    s_add_u32 s44, s44, s45
    s_add_u32 s44, s44, {UT}
    v_lshlrev_b32 v7, 13, v125
    v_lshl_add_u32 v7, v124, 4, v7
    v_add_u32 v127, 0x1000, v7
    v_bfe_u32 v8, v2, 2, 2
    v_lshl_add_u32 v8, v6, 2, v8
    v_lshlrev_b32 v8, 7, v8
    v_bfe_u32 v9, v2, 4, 1
    v_lshl_add_u32 v8, v9, 5, v8
    v_and_b32 v9, 3, v2
    v_lshl_add_u32 v8, v9, 3, v8
    v_add_u32 v8, s15, v8
    s_mul_i32 s45, s9, {2*KB}
    s_add_u32 s45, s45, s10
    s_lshl_b32 s45, s45, 10
    s_add_u32 s45, s45, {WDF}
    s_add_u32 s46, s45, {KB*1024}
    s_lshl_b32 s11, s9, 7
    s_add_u32 s11, s11, s10
    s_lshl_b32 s11, s11, 2
    s_add_u32 s11, s11, {FC}
    v_and_b32 v9, 1, v2
    v_xor_b32 v9, 1, v9
    v_lshlrev_b32 v9, 4, v9
    s_waitcnt lgkmcnt(0)
    s_lshl_b32 s15, s5, 4
    s_lshr_b32 s58, s58, s15
    s_lshl_b32 s58, s58, 16
    s_lshr_b32 s59, s59, s15
    s_lshl_b32 s59, s59, 16
    v_mov_b32 v5, s59
    v_mov_b32 v22, s58
    v_mul_f32 v22, {f2u(LOG2E):#x}, v22
    v_exp_f32 v22, v22
    s_waitcnt vmcnt(2)
    """)
    stamp(a, 1)
    if OPT.get("x1"): a("s_endpgm")
    def ustores():
        for e, sel in ((0, 52), (1, 53)):
            for i in range(4): a(f"v_perm_b32 v{140+4*e+i}, v{33+2*i}, v{32+2*i}, s{sel}")
        a("s_setprio 3")
        a("buffer_store_dwordx4 v[140:143], v7, s[48:51], s44 offen sc1\nbuffer_store_dwordx4 v[144:147], v127, s[48:51], s44 offen sc1")
    ustores()
    lo = f"s_setprio {OPT['pb1']}"
    a("global_load_dwordx2 v[156:157], v23, s[36:37]")
    a(lo)
    for i in range(6): a(f"v_lshlrev_b32 v{16+i}, v9, v{16+i}\nv_and_b32 v{16+i}, s54, v{16+i}")
    a(f"""
    v_cvt_pk_bf16_f32 v22, v22, v22
    v_lshlrev_b32 v22, 16, v22
    v_mul_f32 v16, v16, v22
    v_mul_f32 v17, v17, v22
    v_mul_f32 v18, v18, v22
    v_mul_f32 v19, v19, v22
    v_mul_f32 v24, {f2u(LOG2E):#x}, v16
    v_mul_f32 v27, 0.15915494, v17
    v_mul_f32 v25, 0x41000000, v24
    v_mul_f32 v26, 0x43000000, v24
    v_mul_f32 v28, 0x41000000, v27
    v_mul_f32 v29, 0x43000000, v27
    v_fract_f32 v27, v27
    v_fract_f32 v28, v28
    v_fract_f32 v29, v29
    v_exp_f32 v24, v24
    v_cos_f32 v82, v27
    v_sin_f32 v83, v27
    v_exp_f32 v25, v25
    v_cos_f32 v96, v28
    v_sin_f32 v97, v28
    v_exp_f32 v26, v26
    v_cos_f32 v98, v29
    v_sin_f32 v99, v29
    v_mul_f32 v100, v20, v18
    v_fma_f32 v100, -v21, v19, v100
    v_mul_f32 v101, v20, v19
    v_fma_f32 v101, -v21, v18, -v101
    v_mul_f32 v82, v82, v24
    v_mul_f32 v83, v83, v24
    v_mul_f32 v96, v96, v25
    v_mul_f32 v97, -v97, v25
    v_mul_f32 v98, v98, v26
    v_mul_f32 v99, v99, v26
    v_mov_b32 v112, 0x3f80
    ds_write_b32 v63, v112 offset:{16*FR}
    """)
    tmp = [0]
    def put(src, row):
        t = 113 + tmp[0] % 7; tmp[0] += 1
        return [f"v_cvt_pk_bf16_f32 v{t}, v{src}, v{src+1}", f"ds_write_b32 v63, v{t} offset:{row*FR}"]
    W = lambda j: 80 + 2*j
    cA = put(W(1), 17)
    for j in range(2, 8): cA += cmul(W(j), W(j//2), W(j - j//2)) + put(W(j), 16 + j)
    cB = put(100, 0)
    for m in range(1, 16): cB += cmul(100 + 2*(m & 1), 100 + 2*((m-1) & 1), 96) + put(100 + 2*(m & 1), m)
    def hrow(i):
        if i == 1: return 24, [(j, 24 + j) for j in range(1, 8)]
        if i < 4: return 32 + 4*(i-2), [(2*j, 32 + 4*(i-2) + j) for j in range(1, 4)]
        if i < 8: return 40 + 2*(i-4), [(4, 41 + 2*(i-4))]
        return 48 + i - 8, []
    cC = []; pc = 0
    for i in range(1, 17):
        h = 98 if i == 1 else 104 + 2*(i & 1)
        if i > 1: cC += cmul(h, 98 if i == 2 else 104 + 2*((i-1) & 1), 98)
        row, prods = hrow(i)
        cC += put(h, row)
        for j, rw in prods:
            d = 108 + 2*(pc & 1); pc += 1
            cC += cmul(d, h, W(j)) + put(d, rw)
    main = cA + cC
    seq = interleave(main, cB, 2)
    cur = {}; k = 0; out = []
    for t in seq:
        m = re.match(r"v_cvt_pk_bf16_f32 v(\d+), v(\d+)", t)
        if m:
            n = 113 + k % 7; k += 1; cur[(m.group(1), t in cB)] = n
            t = t.replace(f"f32 v{m.group(1)},", f"f32 v{n},", 1)
        m = re.match(r"ds_write_b32 v63, v(\d+) offset:(\d+)", t)
        if m: t = f"ds_write_b32 v63, v{cur[(m.group(1), int(m.group(2)) < 16*FR)]} offset:{m.group(2)}"
        out.append(t)
    ksp = len(out) * OPT['ef'] // 100
    for t in out[:ksp]: a(t)
    a("s_setprio 3\ns_waitcnt vmcnt(0)")
    tagcheck(a, 156, 23, 36, "b")
    wflag(a, 55)
    for t in range(2):
        for k in range(2): a(f"ds_read_b64_tr_b16 v[{148+4*t+2*k}:{149+4*t+2*k}], v8 offset:{1024*k+64*t}")
    a(lo)
    for t in out[ksp:]: a(t)
    stamp(a, 2)
    a("s_waitcnt lgkmcnt(0)\ns_barrier")
    stamp(a, 3)
    if OPT.get("x3"): a("s_endpgm")
    for s in range(8):
        o = (s >> 2)*FW + (s & 3)*64
        a(f"ds_read_b128 v[{160+12*s}:{163+12*s}], v64 offset:{o}")
        a(f"ds_read_b128 v[{164+12*s}:{167+12*s}], v65 offset:{o+16*FR}")
        a(f"ds_read_b128 v[{168+12*s}:{171+12*s}], v66 offset:{o+48*FR}")
    a(f"""
    s_cmp_ge_u32 s10, {KB}
    s_cbranch_scc1 Lb_nowd
    s_setprio 3
    buffer_store_dwordx4 v[148:151], v10, s[48:51], s45 offen sc1
    buffer_store_dwordx4 v[152:155], v10, s[48:51], s46 offen sc1
    {lo}
Lb_nowd:
    """)
    for s in range(8):
        b = 160 + 12*s
        a(f"s_waitcnt lgkmcnt({min(15, 3*(7-s))})")
        a(f"v_mfma_f32_16x16x32_bf16 v[68:71], v[{b}:{b+3}], v[{b+4}:{b+7}], {'v[68:71]' if s else 0}")
        a(f"v_mfma_f32_16x16x32_bf16 v[72:75], v[{b}:{b+3}], v[{b+8}:{b+11}], {'v[72:75]' if s else 0}")
    for i in range(4): a(f"ds_write_b32 v60, v{68+i} offset:{32*i}\nds_write_b32 v62, v{72+i} offset:{32*i}")
    def eload():
        a("s_load_dwordx16 s[16:31], s[48:49], s14 glc\ns_load_dwordx16 s[32:47], s[48:49], s15 glc")
    def etest():
        for i in range(16): a(f"s_xor_b64 s[{16+2*i}:{17+2*i}], s[{16+2*i}:{17+2*i}], s[58:59]")
        for st in (2, 4, 8, 16):
            for i in range(16, 48, 2*st): a(f"s_or_b64 s[{i}:{i+1}], s[{i}:{i+1}], s[{i+st}:{i+st+1}]")
    def uissue():
        a(f"""
        s_setprio 3
        s_add_u32 s44, s56, {UT}
        s_add_u32 s45, s56, {UT+4096}
        buffer_load_dwordx4 v[56:59], v3, s[48:51], s44 offen
        buffer_load_dwordx4 v[100:103], v3, s[48:51], s45 offen
        """)
    def uload():
        a(f"s_cmp_eq_u32 s57, 0\ns_cbranch_scc1 Lu_done\ns_waitcnt lgkmcnt(0)\ns_mov_b32 s62, {OPT['sp']}\nLse:")
        eload()
        a("s_waitcnt lgkmcnt(0)")
        etest()
        a("s_cbranch_scc0 Lpoll_e_ok\ns_sleep 2\ns_sub_u32 s62, s62, 1\ns_cbranch_scc0 Lse")
        poll(a, 156, 126, "e", -1, OPT['sl2'], 1)
        uissue()
        a(f"""
Lu_done:
        s_setprio 3
        s_mov_b32 s46, s56
        s_and_b32 s30, s8, 7
        s_lshl_b32 s22, s30, 9
        s_mul_i32 s23, s3, 88
        s_add_u32 s22, s22, s23
        s_add_u32 s22, s22, {FC}
        s_load_dwordx2 s[20:21], s[0:1], 112
        """)
    a("s_mov_b32 s58, s60\ns_mov_b32 s59, s60\ns_add_u32 s15, s14, 64\ns_lshl_b32 s56, s4, 13")
    eload()
    a("v_lshlrev_b32 v3, 4, v0")
    a("s_waitcnt lgkmcnt(0)\ns_barrier")
    stamp(a, 4)
    for jj in range(11): a(f"ds_read2st64_b32 v[{160+2*jj}:{161+2*jj}], v{128+jj} offset0:0 offset1:{TS//256}")
    etest()
    a("s_cselect_b32 s57, 1, 0\ns_cbranch_scc1 Lu_early")
    uissue()
    a(lo + "\nLu_early:")
    a(f"""
    ds_write_b128 v123, v[52:55] offset:{C0}
    v_cmp_eq_u32 vcc, 255, v0
    s_waitcnt lgkmcnt(1)
    """)
    for dd in range(2):
        b = 16 + 8*dd; q = 192 + 16*dd
        for p in range(6): a(f"v_cvt_pk_bf16_f32 v{b+p}, v{160+4*p+dd}, v{160+min(4*p+2, 20)+dd}")
        a(f"v_cndmask_b32 v{b+4}, v{b+4}, v52, vcc\nv_cndmask_b32 v{b+5}, v{b+5}, v52, vcc")
        a(f"ds_write_b128 v3, v[{b}:{b+3}] offset:{C0+dd*DSZ}")
        for i in range(4): a(f"v_alignbit_b32 v{q+4+i}, v{b+i+1}, v{b+i}, 16")
        for i in range(4): a(f"v_mov_b32 v{q+8+i}, v{b+i+1}")
        for i in range(4): a(f"v_alignbit_b32 v{q+12+i}, v{b+i+2}, v{b+i+1}, 16")
        for sg in range(1, 4): a(f"ds_write_b128 v3, v[{q+4*sg}:{q+3+4*sg}] offset:{C0+dd*DSZ+sg*CP}")
        if OPT["dbg"]: a(f"s_add_u32 s44, s56, {KR+4096*dd}\nbuffer_store_dwordx4 v[{b}:{b+3}], v3, s[48:51], s44 offen")
    if OPT.get("x5"): a("s_endpgm")
    uload()
    stamp(a, 5)
    a(f"""
    v_mov_b32 v10, v120
    v_mov_b32 v11, v121
    v_mov_b32 v12, v122
    s_waitcnt vmcnt(0)
    ds_write_b128 v3, v[56:59] offset:{C0+4*CP+512}
    ds_write_b128 v3, v[100:103] offset:{C0+DSZ+4*CP+512}
    """)
    wflag(a, 11)
    a("s_waitcnt lgkmcnt(0)\ns_barrier")
    stamp(a, 6)
    a(f"s_setprio {OPT['pb2']}")
    if OPT.get("noc"): a("s_endpgm")
    conv(a)
    gemm2(a)

def rolec(a):
    a("""
    s_load_dwordx2 s[16:17], s[0:1], 0
    s_load_dwordx4 s[32:35], s[0:1], 96
    s_load_dwordx4 s[36:39], s[0:1], 120
    v_lshrrev_b32 v1, 6, v0
    v_and_b32 v2, 63, v0
    v_readfirstlane_b32 s3, v1
    s_sub_u32 s4, s2, 496
    s_lshl_b32 s4, s4, 2
    s_add_u32 s4, s4, s3
    v_lshlrev_b32 v10, 4, v2
    v_mov_b32 v23, 0
    s_mov_b32 s54, 0xffff0000
    s_waitcnt lgkmcnt(0)
    """)
    srd(a, 48, 38, WS_SZ)
    a(f"""
    s_lshl_b32 s13, s4, 15
    v_lshlrev_b32 v11, 7, v2
    v_add_u32 v12, s13, v11
    v_add_u32 v11, s13, v10
    """)
    a("global_load_dwordx4 v[48:51], v10, s[34:35]")
    for i in range(4): a(f"global_load_dword v{26+i}, v12, s[16:17]\nv_add_u32 v12, 0x2000, v12")
    for r in range(4): a(f"global_load_dwordx4 v[{80+4*r}:{83+4*r}], v11, s[16:17] offset:{1024*r}")
    for i in range(4): a(f"v_lshlrev_b32 v{52+2*i}, 16, v{48+i}\nv_and_b32 v{53+2*i}, s54, v{48+i}") if False else None
    a("s_waitcnt vmcnt(0)")
    for i in range(4): a(f"v_lshlrev_b32 v{52+2*i}, 16, v{48+i}\nv_and_b32 v{53+2*i}, s54, v{48+i}")
    a(f"s_lshl_b32 s15, s4, 7\ns_add_u32 s15, s15, {G_OFF}\ns_mov_b64 s[20:21], 0x1111\nv_mov_b32 v21, 0\ns_mov_b32 s18, 8\nLc_loop:\ns_waitcnt vmcnt(0)")
    for r in range(16): a(f"v_mov_b32 v{64+r}, v{80+r}")
    a("v_add_u32 v11, 0x1000, v11\ns_cmp_eq_u32 s18, 1\ns_cbranch_scc1 Lc_nold")
    for r in range(4): a(f"global_load_dwordx4 v[{80+4*r}:{83+4*r}], v11, s[16:17] offset:{1024*r}")
    a("Lc_nold:")
    for r in range(4): a(f"v_mov_b32 v{32+r}, 0")
    for i in range(4):
        T = lambda r: 36 + 2*r
        for r in range(4): a(f"v_lshlrev_b32 v{T(r)}, 16, v{64+4*r+i}\nv_and_b32 v{T(r)+1}, s54, v{64+4*r+i}")
        for r in range(4): a(f"v_pk_mul_f32 v[{T(r)}:{T(r)+1}], v[{T(r)}:{T(r)+1}], v[{52+2*i}:{53+2*i}]")
        for r in range(4): a(f"v_cvt_pk_bf16_f32 v{T(r)}, v{T(r)}, v{T(r)+1}")
        for r in range(4): a(f"v_and_b32 v{T(r)+1}, s54, v{T(r)}\nv_lshlrev_b32 v{T(r)}, 16, v{T(r)}")
        for r in range(4): a(f"v_add_f32 v{32+r}, v{32+r}, v{T(r)+1}")
        for r in range(4): a(f"v_add_f32 v{32+r}, v{32+r}, v{T(r)}")
    for sh in (8, 4, 2, 1):
        for r in range(4): a(f"v_add_f32_dpp v{32+r}, v{32+r}, v{32+r} row_ror:{sh} {DPP}")
    for r in range(1, 4): a(f"v_mov_b32_dpp v32, v{32+r} quad_perm:[0,1,2,3] row_mask:0xf bank_mask:{1<<r:#x}")
    a(f"""
    v_mov_b32 v33, v32
    v_permlane16_swap_b32 v32, v33
    v_add_f32 v32, v32, v33
    v_mov_b32 v33, v32
    v_permlane32_swap_b32 v32, v33
    s_mov_b64 exec, s[20:21]
    v_add_f32 v21, v32, v33
    s_mov_b64 exec, -1
    s_lshl_b64 s[20:21], s[20:21], 16
    s_cselect_b64 s[20:21], s[20:21], 0x2222
    s_sub_u32 s18, s18, 1
    s_cmp_lg_u32 s18, 0
    s_cbranch_scc1 Lc_loop
    v_and_b32 v20, 60, v2
    v_and_b32 v22, 1, v2
    v_lshl_add_u32 v20, v22, 6, v20
    v_cvt_pk_bf16_f32 v32, v21, v21
    v_lshlrev_b32 v32, 16, v32
    v_mul_f32 v32, {f2u(-LOG2E):#x}, v32
    v_exp_f32 v32, v32
    v_add_f32 v32, 1.0, v32
    v_rcp_f32 v32, v32
    v_cvt_pk_bf16_f32 v32, v32, v32
    v_lshlrev_b32 v32, 16, v32
    s_mov_b32 exec_lo, 0x33333333
    s_mov_b32 exec_hi, 0x33333333
    buffer_store_dword v32, v20, s[48:51], s15 offen sc1
    global_load_dwordx2 v[24:25], v23, s[36:37] sc1
    s_waitcnt vmcnt(0)
    """)
    tagcheck(a, 24, 23, 36, "c")
    a(f"""
    s_lshl_b32 s14, s4, 3
    s_add_u32 s14, s14, {FG}
    s_mov_b64 exec, 1
    buffer_store_dwordx2 v[24:25], v23, s[48:51], s14 offen sc1
    s_endpgm
    """)
def gemm1(a):
    WB = 32768
    stamp(a, 0)
    a(f"s_setprio {OPT['pa0']}")
    a("""
    s_load_dwordx2 s[16:17], s[0:1], 0
    s_load_dwordx4 s[20:23], s[0:1], 80
    s_load_dwordx4 s[24:27], s[0:1], 120
    v_lshrrev_b32 v56, 6, v0
    v_and_b32 v57, 63, v0
    v_readfirstlane_b32 s3, v56
    s_and_b32 s4, s2, 7
    s_sub_u32 s5, s2, 256
    s_lshr_b32 s5, s5, 3
    """)
    if OPT["map"] == 0: a("""
    s_mul_i32 s4, s4, 30
    s_add_u32 s4, s4, s5
    s_cmp_ge_u32 s4, 120
    s_cselect_b32 s5, 8, 0
    s_cselect_b32 s6, 120, 0
    s_sub_u32 s4, s4, s6
    s_lshr_b32 s6, s4, 3
    s_and_b32 s4, s4, 7
    s_add_u32 s5, s5, s4
    """)
    else: a("""
    s_cmp_ge_u32 s5, 15
    s_cselect_b32 s6, 15, 0
    s_cselect_b32 s9, 1, 0
    s_sub_u32 s6, s5, s6
    s_lshl_b32 s4, s4, 1
    s_add_u32 s5, s9, s4
    """)
    a("""
    s_lshr_b32 s7, s3, 1
    s_and_b32 s8, s3, 1
    """)
    a(f"""
    s_lshl_b32 s9, s5, 17
    s_lshl_b32 s10, s3, 15
    s_add_u32 s9, s9, s10
    v_lshrrev_b32 v58, 3, v57
    v_lshlrev_b32 v58, 10, v58
    v_add_u32 v58, s9, v58
    v_lshrrev_b32 v59, {3 if OPT['sx'] else 4}, v57
    v_and_b32 v60, 7, v57
    v_xor_b32 v61, v60, v59
    v_lshl_add_u32 v11, v61, 4, v58
    v_xor_b32 v61, {1 if OPT['sx'] else 4}, v61
    v_lshl_add_u32 v12, v61, 4, v58
    v_add_u32 v12, 0x2000, v12
    v_add_u32 v13, 0x4000, v11
    v_add_u32 v14, 0x4000, v12
    s_mul_i32 s9, s8, 192
    s_mul_i32 s10, s6, 192
    s_lshl_b32 s11, s7, 1
    """)
    for qq in range(3):
        a(f"""
        v_add_u32 v58, s9, v57
        v_add_u32 v58, {64*qq}, v58
        v_mul_u32_u24 v60, 43691, v58
        v_lshrrev_b32 v60, 19, v60
        v_mul_u32_u24 v61, 12, v60
        v_sub_u32 v61, v58, v61
        v_xor_b32 v61, s11, v61
        v_and_b32 v58, {2 if OPT['sw'] else 0}, v60
        v_xor_b32 v61, v58, v61
        v_mul_u32_u24 v60, 2752, v60
        v_lshl_add_u32 v60, v61, 4, v60
        v_add_u32 v{8+qq}, s10, v60
        """)
    a("s_waitcnt lgkmcnt(0)")
    srd(a, 28, 16, 2048*1024)
    a("s_cmp_eq_u32 s7, 0\ns_cselect_b32 s32, s20, s22\ns_cselect_b32 s33, s21, s23\ns_mov_b32 s34, 1409024\ns_mov_b32 s35, 0x00020000")
    srd(a, 36, 26, WS_SZ)
    a(f"""
    s_lshl_b32 s12, s3, 12
    s_mul_i32 s13, s3, 3072
    s_add_u32 s13, s13, {WB}
    s_mul_i32 s14, s5, {OPT['rr']}
    s_mul_i32 s15, s6, {OPT['rc']}
    s_add_u32 s14, s14, s15
    s_and_b32 s14, s14, 7
    s_mul_i32 s15, s14, {64*2752}
    s_lshl_b32 s14, s14, 7
    """)
    def dma_x(slot):
        L = []
        for qq in range(4):
            L.append(f"s_add_u32 m0, s12, {slot*16384+qq*1024}\nbuffer_load_dwordx4 v{11+qq}, s[28:31], s14 offen lds")
        L[-1] += "\ns_add_u32 s14, s14, 128\ns_and_b32 s14, s14, 1023"
        return L
    def dma_w(slot):
        L = []
        for qq in range(3):
            L.append(f"s_add_u32 m0, s13, {slot*12288+qq*1024}\nbuffer_load_dwordx4 v{8+qq}, s[32:35], s15 offen lds")
        L[-1] += f"\ns_add_u32 s15, s15, {32*2752}\ns_cmp_eq_u32 s15, {512*2752}\ns_cselect_b32 s15, 0, s15"
        return L
    if OPT["pf"] == 1:
        a("""
        s_and_b32 s9, s5, 7
        s_mul_i32 s9, s9, 176128
        s_mul_i32 s10, s6, 192
        s_add_u32 s9, s9, s10
        s_lshl_b32 s10, s8, 7
        s_add_u32 s9, s9, s10
        v_mul_u32_u24 v58, 2752, v57
        buffer_load_dword v160, v58, s[32:35], s9 offen
        s_and_b32 s9, s6, 3
        s_lshl_b32 s9, s9, 8
        s_lshl_b32 s10, s7, 7
        s_add_u32 s9, s9, s10
        s_lshl_b32 s10, s5, 17
        s_add_u32 s9, s9, s10
        v_and_b32 v58, 127, v0
        v_lshlrev_b32 v58, 10, v58
        buffer_load_dword v161, v58, s[28:31], s9 offen
        """)
    if OPT.get("g1twice"): a("s_mov_b32 s60, 2\nLg1_tw:\ns_barrier\ns_mov_b32 s14, 0\ns_mov_b32 s15, 0")
    for t in dma_x(0) + dma_w(0): a(t)
    for t in dma_w(1): a(t)
    a(f"""
    v_and_b32 v58, 31, v57
    v_lshrrev_b32 v59, 5, v57
    {'v_bfe_u32 v60, v58, 3, 1' if OPT['sx'] else 'v_lshrrev_b32 v60, 1, v58'}
    {'v_xor_b32 v60, v60, v58' if OPT['sx'] else ''}
    v_and_b32 v60, 7, v60
    v_xor_b32 v60, v60, v59
    s_lshl_b32 s9, s7, 13
    v_lshlrev_b32 v58, 7, v58
    v_add_u32 v58, s9, v58
    """)
    for ks in range(4): a(f"v_xor_b32 v61, {2*ks}, v60\nv_lshl_add_u32 v{4+ks}, v61, 4, v58")
    a(f"""
    v_bfe_u32 v58, v57, 4, 1
    v_bfe_u32 v60, v57, 2, 2
    v_lshl_add_u32 v60, v59, 3, v60
    v_mul_u32_u24 v60, 192, v60
    v_mul_u32_u24 v61, 6144, v58
    v_add_u32 v60, v60, v61
    v_and_b32 v61, 3, v57
    v_lshl_add_u32 v60, v61, 3, v60
    v_add_u32 v60, {WB}, v60
    s_mul_i32 s9, s8, 3
    v_bfe_u32 v61, v57, 3, {1 if OPT['sw'] else 0}
    v_xor_b32 v58, v58, v61
    """)
    for tt in range(3):
        a(f"s_add_u32 s10, s9, {tt}\nv_xor_b32 v61, s10, v58\nv_lshl_add_u32 v{1+tt}, v61, 5, v60")
    a("v_lshlrev_b32 v15, 4, v57")
    F = [(16, 28), (36, 48)]
    def reads(f, s, ks):
        wb, xb = F[f]; L = []
        xo = ((s >> 1) & 1) * 16384; ks4 = (s & 1) * 2 + ks
        wo = (s & 3) * 12288 + ks * 3072
        L.append(f"ds_read_b128 v[{xb}:{xb+3}], v{4+ks4} offset:{xo}")
        for tt in range(3):
            L.append(f"ds_read_b64_tr_b16 v[{wb+4*tt}:{wb+4*tt+1}], v{1+tt} offset:{wo}")
            L.append(f"ds_read_b64_tr_b16 v[{wb+4*tt+2}:{wb+4*tt+3}], v{1+tt} offset:{wo+768}")
        L.append(f"ds_read_b128 v[{xb+4}:{xb+7}], v{4+ks4} offset:{xo+4096}")
        return L
    def mfmas(f, z=False):
        wb, xb = F[f]; L = []
        for mt in range(2):
            for tt in range(3):
                c = 64 + 16*(2*tt+mt)
                L.append(f"v_mfma_f32_32x32x16_bf16 v[{c}:{c+15}], v[{wb+4*tt}:{wb+4*tt+3}], v[{xb+4*mt}:{xb+4*mt+3}], " + ("0" if z else f"v[{c}:{c+15}]"))
        if OPT.get("g1nomfma"): L = ["s_nop 0"]*6
        return L
    stamp(a, 1)
    a(f"s_setprio {OPT['pa1']}")
    a("s_waitcnt vmcnt(3)\ns_barrier")
    stamp(a, 2)
    for t in reads(0, 0, 0): a(t)
    def stage(s, dma, vm, last=False, da=[], db=None):
        m = mfmas(0, db is not None); r = reads(1, s, 1)
        a("s_waitcnt lgkmcnt(0)")
        for t in [m[0]] + r[0:3] + [m[1]] + r[3:6] + [m[2]] + r[6:8] + m[3:] + da: a(t)
        if last:
            a("s_waitcnt lgkmcnt(0)")
            for t in mfmas(1): a(t)
            return
        a(f"s_waitcnt lgkmcnt(0) vmcnt({vm})\ns_barrier")
        m = mfmas(1); r = reads(0, s+1, 0)
        d = []
        if dma and not OPT.get("g1nodma"):
            if s & 1: d += dma_x((s >> 1) & 1)
            d += dma_w(s & 3)
        if db is not None: d = db
        seq = [m[0]] + r[0:3] + [m[1]] + r[3:6] + [m[2]] + r[6:8] + d[0:1] + [m[3]] + d[1:3] + [m[4]] + d[3:5] + [m[5]] + d[5:]
        for t in seq: a(t)
    stage(0, True, 4, da=dma_x(1), db=dma_w(2) + dma_w(3)); stage(1, True, 6, da=dma_w(0)); stage(2, True, 10); stage(3, True, 6)
    a("s_mov_b32 s40, 2\nLg1_loop:")
    for s in range(4): stage(s, True, 6 if s & 1 else 10)
    a("s_sub_u32 s40, s40, 1\ns_cmp_lg_u32 s40, 0\ns_cbranch_scc1 Lg1_loop")
    stamp(a, 3)
    a("v_mov_b32 v162, 0\nglobal_load_dwordx2 v[160:161], v162, s[24:25]")
    stage(12, False, 11); stage(13, False, 4); stage(14, False, 1); stage(15, False, 0, last=True)
    if OPT.get("g1twice"): a("v_and_b32 v57, 63, v0\ns_nop 15\ns_sub_u32 s60, s60, 1\ns_cmp_lg_u32 s60, 0\ns_cbranch_scc1 Lg1_tw")
    stamp(a, 4)
    c1 = -2*0.7978845608028654*LOG2E; c2 = c1*0.044715
    a(f"""
    v_mov_b32 v56, {f2u(c1):#x}
    v_mov_b32 v57, {f2u(c1):#x}
    v_mov_b32 v58, 1.0
    v_mov_b32 v59, 1.0
    s_mov_b32 s42, {f2u(c2):#x}
    s_mov_b32 s43, {f2u(c2):#x}
    s_lshl_b32 s9, s5, 2
    s_lshl_b32 s10, s7, 1
    s_add_u32 s9, s9, s10
    s_mul_i32 s9, s9, {KB}
    s_mul_i32 s10, s6, 6
    s_mul_i32 s11, s8, 3
    s_add_u32 s10, s10, s11
    s_add_u32 s9, s9, s10
    s_lshl_b32 s9, s9, 10
    s_add_u32 s11, s9, {KB*1024}
    """)
    for tt in range(3):
        a(f"s_cmp_ge_u32 s10, {KB-tt}\ns_cbranch_scc1 Lg1_done")
        for mt in range(2):
            c = 64 + 16*(2*tt+mt); q = 16 + 8*mt; o = 32 + 4*((2*tt+mt) % 4)
            P = lambda b, p: f"v[{b+2*p}:{b+2*p+1}]"
            for p in range(4): a(f"v_pk_mul_f32 {P(q,p)}, {P(c,p)}, {P(c,p)}")
            for p in range(4): a(f"v_pk_fma_f32 {P(q,p)}, {P(q,p)}, s[42:43], v[56:57]")
            for p in range(4): a(f"v_pk_mul_f32 {P(q,p)}, {P(q,p)}, {P(c,p)}")
            for i in range(8): a(f"v_exp_f32 v{q+i}, v{q+i}")
            for p in range(4): a(f"v_pk_mul_f32 {P(c,p)}, {P(c,p)}, {P(c+8,p)}")
            for p in range(4): a(f"v_pk_add_f32 {P(q,p)}, {P(q,p)}, v[58:59]")
            for i in range(8): a(f"v_rcp_f32 v{q+i}, v{q+i}")
            for p in range(4): a(f"v_pk_mul_f32 {P(c,p)}, {P(c,p)}, {P(q,p)}")
            for p in range(4): a(f"v_cvt_pk_bf16_f32 v{o+p}, v{c+2*p}, v{c+2*p+1}")
            a(f"buffer_store_dwordx4 v[{o}:{o+3}], v15, s[36:39], s{9 if mt == 0 else 11} offen offset:{tt*1024} sc1")
    a("Lg1_done:")
    stamp(a, 5)
    a(f"""
    s_lshl_b32 s9, s5, 4
    s_add_u32 s9, s9, s6
    s_lshl_b32 s9, s9, 3
    s_add_u32 s9, s9, {FH}
    s_waitcnt vmcnt(0)
    s_barrier
    """)
    stamp(a, 6)
    a("s_cmp_lg_u32 s3, 0\ns_cbranch_scc1 Lg1_end")
    tagcheck(a, 160, 162, 24, "g1")
    a("s_mov_b64 exec, 1\nbuffer_store_dwordx2 v[160:161], v162, s[36:39], s9 offen sc1")
    a(f"s_lshl_b32 s9, s2, 7\ns_add_u32 s9, s9, {FWF-256*128}\nbuffer_store_dword v160, v162, s[36:39], s9 offen sc1\nLg1_end:")
    endp(a, 0, 36, 7)

def kd(name, vgpr=256):
    return f""".p2align 6
.amdhsa_kernel {name}
  .amdhsa_next_free_vgpr {vgpr}
  .amdhsa_next_free_sgpr 100
  .amdhsa_accum_offset {vgpr}
  .amdhsa_group_segment_fixed_size 0
  .amdhsa_kernarg_size 136
  .amdhsa_user_sgpr_count 2
  .amdhsa_user_sgpr_kernarg_segment_ptr 1
  .amdhsa_system_sgpr_workgroup_id_x 1
.end_amdhsa_kernel
"""
def head(a, name):
    a.raw(f".globl {name}\n.p2align 8\n.type {name},@function"); a.label(name)

def conv(a):
    S = [64, 128]
    def reads(st, qi):
        L = []; b = S[st]
        for p in range(8):
            L.append(f"ds_read_b128 v[{b+32+4*p}:{b+35+4*p}], v11 offset:{512*p+64*(3-qi)}")
            L.append(f"ds_read_b64 v[{b+4*p}:{b+4*p+1}], v10 offset:{512*(7-p)+64*(3-qi)}")
            L.append(f"ds_read_b64 v[{b+4*p+2}:{b+4*p+3}], v10 offset:{512*(7-p)+64*(3-qi)+8}")
        return L
    def mf(qi):
        L = []; b = S[qi & 1]
        for p in range(8):
            for I in range(p, 8):
                c = 192 + 4*I; P = I - p
                L.append(f"v_mfma_f32_16x16x32_bf16 v[{c}:{c+3}], v[{b+4*p}:{b+4*p+3}], v[{b+32+4*P}:{b+35+4*P}], " + ("0" if qi == 0 and p == 0 else f"v[{c}:{c+3}]"))
        return L
    for t in reads(0, 0): a(t)
    g2_addr(a)
    a(f"v_lshlrev_b32 v13, 4, v2\ns_lshl_b32 s31, s3, 12")
    def wload(st):
        L = [f"s_add_u32 s15, s{24+i}, s7\nbuffer_load_dwordx4 v[{WREG[st]+4*i}:{WREG[st]+4*i+3}], v13, s[48:51], s15 offen" for i in range(2)]
        L[-1] += adv(7)
        return L
    def wdma(st):
        L = [f"s_add_u32 m0, s31, {LOFF[st]+1024*i}\ns_add_u32 s15, s{24+i}, s32\nbuffer_load_dwordx4 v13, s[48:51], s15 offen lds" for i in range(2)]
        L[-1] += adv(32)
        return L
    early = sum([wload(st) for st in range(9)], []) + wdma(WR) + wdma(WR+1)
    late = sum([wload(st) for st in range(9, WR)], [])
    a(f"""
    s_mul_i32 s7, s30, {OPT['hc']}
    s_and_b32 s32, s28, 3
    s_mul_i32 s32, s32, {OPT['hr']}
    s_add_u32 s7, s7, s32
    s_cmp_ge_u32 s7, {NS}
    s_cselect_b32 s32, {NS}, 0
    s_sub_u32 s7, s7, s32
    s_add_u32 s32, s7, {WR}
    s_cmp_ge_u32 s32, {NS}
    s_cselect_b32 s33, {NS}, 0
    s_sub_u32 s32, s32, s33
    s_lshl_b32 s7, s7, 10
    s_lshl_b32 s32, s32, 10
    s_mov_b32 s55, s7
    v_min_u32 v9, {NS-1}, v2
    v_lshl_add_u32 v9, v9, 2, s22
    s_add_u32 s22, s22, s48
    s_addc_u32 s23, s49, 0
    """)
    Q = OPT["wq"]
    allw = early + late
    for qi in range(4):
        a("s_waitcnt lgkmcnt(0)")
        if qi == Q - 1:
            for r, n, o in ((36, 8, 0), (16, 4, 32), (96, 4, 48), (44, 2, 64), (34, 2, 72), (56, 2, 80)):
                a(f"s_load_dwordx{n} s[{r}:{r+n-1}], s[22:23], {o}")
        if qi == Q:
            R = [36, 38, 40, 42, 16, 18, 96, 98, 44, 34, 56]
            for r in R: a(f"s_xor_b64 s[{r}:{r+1}], s[{r}:{r+1}], s[58:59]")
            for r in R[1:]: a(f"s_or_b64 s[36:37], s[36:37], s[{r}:{r+1}]")
            a("s_cbranch_scc0 Lpoll_w_ok")
            poll(a, 18, 9, "w", -1, OPT['sl2'], 1)
        nxt = reads((qi+1) & 1, qi+1) if qi < 3 else []
        if qi >= Q:
            n = 12 if qi < 3 else 99
            if qi < 3: n = min(n, len(allw) - len(late))
            nxt = nxt + allw[:n]; allw = allw[n:]
        for t in interleave(mf(qi), nxt, 1): a(t)
    stamp(a, 7)
    RB = C0 + 2*DSZ
    a(f"""
    s_lshl_b32 s14, s3, 12
    s_add_u32 s14, s14, {RB}
    v_add_u32 v14, s14, v13
    s_xor_b32 s15, s3, 1
    s_lshl_b32 s15, s15, 12
    s_add_u32 s15, s15, {RB}
    v_add_u32 v15, s15, v13
    s_lshl_b32 s13, s6, 11
    s_add_u32 s14, s12, s13
    s_add_u32 s14, s14, {4*CP+512}
    v_add_u32 v16, s14, v12
    s_nop 7
    s_cmp_eq_u32 s6, 0
    s_cbranch_scc1 Lc_lo
    """)
    for I in range(4): a(f"ds_write_b128 v14, v[{192+4*I}:{195+4*I}] offset:{1024*I}")
    for r in range(16): a(f"v_mov_b32 v{160+r}, v{208+r}")
    a("s_branch Lc_join\nLc_lo:")
    for I in range(4): a(f"ds_write_b128 v14, v[{208+4*I}:{211+4*I}] offset:{1024*I}")
    for r in range(16): a(f"v_mov_b32 v{160+r}, v{192+r}")
    a("Lc_join:")
    for I in range(4): a(f"ds_read_b64 v[{128+2*I}:{129+2*I}], v16 offset:{512*I}")
    a(f"""
    s_waitcnt lgkmcnt(0)
    s_barrier
    s_lshl_b32 s14, s5, 12
    s_add_u32 s14, s14, s46
    s_add_u32 s14, s14, s13
    s_add_u32 s14, s14, {AT}
    """)
    for I in range(4): a(f"ds_read_b128 v[{176+4*I}:{179+4*I}], v15 offset:{1024*I}")
    for I in range(4):
        for hh in range(2):
            u = 128 + 2*I + hh; f = 160 + 4*I + 2*hh
            a(f"v_lshlrev_b32 v136, 16, v{u}\nv_and_b32 v137, s54, v{u}\nv_fmac_f32 v{f}, v136, v5\nv_fmac_f32 v{f+1}, v137, v5")
    a("s_waitcnt lgkmcnt(0)")
    a("s_setprio 3")
    for r in range(0, 16, 2): a(f"v_pk_add_f32 v[{160+r}:{161+r}], v[{160+r}:{161+r}], v[{176+r}:{177+r}]")
    for I in range(4):
        a(f"v_cvt_pk_bf16_f32 v{192+2*I}, v{160+4*I}, v{161+4*I}\nv_cvt_pk_bf16_f32 v{193+2*I}, v{162+4*I}, v{163+4*I}")
        a(f"buffer_store_dwordx2 v[{192+2*I}:{193+2*I}], v12, s[48:51], s14 offen offset:{512*I} sc1")
    a(f"v_mov_b32 v3, v13\nv_add_u32 v11, s31, v13\ns_waitcnt vmcnt(0)\ns_barrier")
    flag(a, 0, "l")
    a(f"s_setprio {OPT['pb3']}\nv_mov_b32 v13, v3")
    stamp(a, 8)
    if OPT.get("now"): a("s_endpgm")
    a(f"s_mul_i32 s31, s3, {RS}")
    for st in range(WR+2, NS):
        for t in wdma(st): a(t)

NS = KB // 4; WR = 13; HD = 9; ATL = 73728; AC = 96; RS = 2048*(NS-WR-2)
WREG = [24, 32, 40, 48, 56, 224, 232, 240, 248, 64, 72, 80, 88]
HREG = [160 + 8*i for i in range(8)] + [16]
LOFF = {WR: 0, WR+1: 2048}
for _s in range(WR+2, NS): LOFF[_s] = 16384 + 2048*(_s-WR-2)
def adv(r): return f"\ns_add_u32 s{r}, s{r}, 1024\ns_cmp_eq_u32 s{r}, {NS*1024}\ns_cselect_b32 s{r}, 0, s{r}"
def g2_addr(a):
    a(f"""
    s_lshl_b32 s28, s9, 2
    s_lshr_b32 s29, s8, 3
    s_add_u32 s28, s28, s29
    s_lshl_b32 s10, s30, 1
    s_add_u32 s10, s10, s5
    s_lshl_b32 s11, s28, 1
    s_add_u32 s11, s11, s6
    s_mul_i32 s29, s3, {NS*1024}
    s_mul_i32 s24, s10, {KB*1024}
    s_xor_b32 s25, s10, 1
    s_mul_i32 s25, s25, {KB*1024}
    s_mul_i32 s26, s11, {KB*1024}
    s_xor_b32 s27, s11, 1
    s_mul_i32 s27, s27, {KB*1024}
    s_add_u32 s26, s26, s29
    s_add_u32 s27, s27, s29
    s_add_u32 s29, s29, {WDF}
    s_add_u32 s24, s24, s29
    s_add_u32 s25, s25, s29
    """)

def gemm2(a):
    a(f"""
    s_lshl_b32 s44, s11, 3
    s_add_u32 s44, s44, {FG}
    v_mov_b32 v4, s44
    s_lshl_b32 s44, s30, 8
    s_add_u32 s44, s44, {FL}
    v_lshl_add_u32 v9, v2, 3, s44
    v_cmp_gt_u32 vcc, 32, v2
    v_cndmask_b32 v9, v4, v9, vcc
    """)
    srd(a, 40, 20, 2048*1024)
    a(f"""
    s_lshl_b32 s32, s10, 17
    s_lshl_b32 s33, s11, 6
    s_add_u32 s32, s32, s33
    s_add_u32 s32, s32, {AT}
    s_add_u32 s33, s32, 65536
    v_lshrrev_b32 v4, 2, v2
    v_lshlrev_b32 v4, 12, v4
    v_and_b32 v5, 3, v2
    v_lshl_add_u32 v4, v5, 4, v4
    v_and_b32 v6, 31, v2
    v_lshlrev_b32 v7, 2, v6
    s_lshl_b32 s34, s11, 7
    s_add_u32 s34, s34, {G_OFF}
    s_lshl_b32 s35, s3, 11
    s_add_u32 s35, s35, {ATL}
    v_lshrrev_b32 v14, 5, v2
    v_bfe_u32 v15, v2, 2, 2
    v_lshl_add_u32 v15, v14, 2, v15
    v_lshlrev_b32 v15, 6, v15
    v_bfe_u32 v1, v2, 4, 1
    v_lshl_add_u32 v15, v1, 5, v15
    v_lshl_add_u32 v15, v5, 3, v15
    v_add_u32 v15, s35, v15
    v_lshlrev_b32 v6, 10, v6
    v_lshl_add_u32 v6, v14, 4, v6
    s_lshl_b32 s36, s11, 15
    s_lshl_b32 s37, s10, 6
    s_add_u32 s36, s36, s37
    s_lshr_b32 s44, s28, 1
    s_lshl_b32 s44, s44, 7
    s_add_u32 s44, s44, {FH}
    v_lshl_add_u32 v5, v2, 3, s44
    v_add_u32 v12, s31, v3
    """)
    stamp(a, 9)
    a("s_setprio 0")
    a("s_cmp_lg_u32 s3, 0\ns_cbranch_scc1 Lg2_w")
    a(f"""
    s_cmp_ge_u32 s2, 240
    s_cbranch_scc1 Lsp_ok
    s_lshl_b32 s44, s2, 7
    s_add_u32 s44, s44, {FWF}
    s_mov_b32 s62, {OPT['sp2']}
Lsp:
    s_load_dword s45, s[48:49], s44 glc
    s_waitcnt lgkmcnt(0)
    s_cmp_eq_u32 s45, s60
    s_cbranch_scc1 Lsp_ok
    s_sleep 2
    s_sub_u32 s62, s62, 1
    s_cbranch_scc0 Lsp
Lsp_ok:
    """)
    poll(a, 0, 5, "h", 0x7fff, OPT["sl"])
    a("Lg2_w:\ns_barrier")
    a("s_setprio 3")
    stamp(a, 10)
    def loads(st):
        L = []; b = HREG[st % HD]
        for i in range(2):
            L.append(f"s_add_u32 s15, s{26+i}, s55\nbuffer_load_dwordx4 v[{b+4*i}:{b+4*i+3}], v3, s[48:51], s15 offen")
        L[-1] += adv(55)
        return L
    for st in range(HD):
        for t in loads(st): a(t)
    a("buffer_load_dwordx2 v[0:1], v9, s[48:51], 0 offen sc1")
    for st in range(NS):
        b = HREG[st % HD]; w = WREG[st % WR]
        a(f"s_waitcnt vmcnt({2*(min(st+HD, NS)-st-1) + (1 if st < HD else 3 if HD < st < 2*HD else 0)})" + (" lgkmcnt(0)" if st == WR else ""))
        for i in range(2):
            for j in range(2):
                c = AC + 16*(2*i+j)
                a(f"v_mfma_f32_32x32x16_bf16 v[{c}:{c+15}], v[{w+4*i}:{w+4*i+3}], v[{b+4*j}:{b+3+4*j}], " + ("0" if st == 0 else f"v[{c}:{c+15}]"))
        if st == HD:
            check(a, 0, 9, "l")
            a(f"""
            s_mov_b32 m0, s35
            buffer_load_dwordx4 v4, s[48:51], s32 offen lds
            s_add_u32 m0, s35, 1024
            buffer_load_dwordx4 v4, s[48:51], s33 offen lds
            buffer_load_dword v8, v7, s[48:51], s34 offen sc1
            """)
        if st + HD < NS:
            for t in loads(st + HD): a(t)
        if st + WR < NS:
            for i in range(2): a(f"ds_read_b128 v[{w+4*i}:{w+4*i+3}], v{11 if st < 2 else 12} offset:{LOFF[st+WR]+1024*i}")
    stamp(a, 11)
    a("v_sub_f32 v9, 1.0, v8\nv_cvt_pk_bf16_f32 v9, v9, v9\nv_lshlrev_b32 v9, 16, v9")
    for x in range(1, 4):
        a(f"s_xor_b32 s44, s3, {x}\ns_mul_i32 s44, s44, {RS}\ns_add_u32 s44, s44, {16384+(x-1)*4096}\nv_add_u32 v{x if x < 3 else 4}, s44, v3")
    for x in range(1, 4):
        for qd in range(4): a(f"ds_write_b128 v12, v[{AC+16*x+4*qd}:{AC+3+16*x+4*qd}] offset:{16384+(x-1)*4096+1024*qd}")
    for qd in range(4): a(f"ds_read_b64_tr_b16 v[{80+2*qd}:{81+2*qd}], v15 offset:{512*qd}")
    a("s_waitcnt lgkmcnt(0)\ns_barrier")
    for x in range(3):
        for qd in range(4): a(f"ds_read_b128 v[{160+16*x+4*qd}:{163+16*x+4*qd}], v{x+1 if x < 2 else 4} offset:{1024*qd}")
    for p in range(8):
        a(f"v_lshlrev_b32 v{24+2*p}, 16, v{80+p}\nv_and_b32 v{25+2*p}, s54, v{80+p}\nv_pk_mul_f32 v[{24+2*p}:{25+2*p}], v[{24+2*p}:{25+2*p}], v[8:9] op_sel_hi:[1,0]")
    for x in range(3):
        a(f"s_waitcnt lgkmcnt({8-4*x})")
        for r in range(0, 16, 2): a(f"v_pk_add_f32 v[{AC+r}:{AC+1+r}], v[{AC+r}:{AC+1+r}], v[{160+16*x+r}:{161+16*x+r}]")
    for p in range(8):
        a(f"v_pk_fma_f32 v[{24+2*p}:{25+2*p}], v[{AC+2*p}:{AC+1+2*p}], v[8:9], v[{24+2*p}:{25+2*p}] op_sel:[0,1,0] op_sel_hi:[1,1,1]")
    for p in range(8): a(f"v_cvt_pk_bf16_f32 v{88+p}, v{24+2*p}, v{25+2*p}")
    for pr in range(2):
        b = 88 + 4*pr
        a(f"v_permlane32_swap_b32 v{b}, v{b+2}\nv_permlane32_swap_b32 v{b+1}, v{b+3}")
        a(f"buffer_store_dwordx4 v[{b}:{b+3}], v6, s[40:43], s36 offen offset:{32*pr}" + ["", " sc1", " sc0 sc1", " nt"][OPT["ost"]])
    endp(a, 0, 48, 12)

def main(path):
    ref = open("gated_mix__ssm_conv_s4__geglu_ffn__prompt.s.ref").read().split("\n")
    hdr = [l for l in ref if l.startswith(";") and "@launch" not in l and "Override" not in l and "grid=ceil" not in l]
    L = ["; @launch kernel=k1_kernel grid=(512,1,1) block=(256,1,1) lds=81920"]
    a = Asm()
    head(a, "k1_kernel")
    a("s_cmp_ge_u32 s2, 256\ns_cbranch_scc1 Lk1_b")
    roleb(a)
    a("Lk1_b:\ns_cmp_ge_u32 s2, 496\ns_cbranch_scc1 Lk1_x")
    gemm1(a)
    a("Lk1_x:\ns_cmp_ge_u32 s2, 512\ns_cbranch_scc1 Lk1_y")
    rolec(a)
    a("Lk1_y:\ns_endpgm")
    out = "\n".join(hdr + L) + '\n.amdgcn_target "amdgcn-amd-amdhsa--gfx950"\n.text\n' + a.text()
    out += '.section .rodata,"a"\n' + kd("k1_kernel")
    open(path, "w").write(out)

if __name__ == "__main__":
    for kv in sys.argv[2:]:
        k, v = kv.split("="); OPT[k] = int(v)
    main(sys.argv[1])
```

```python
import sys, struct, re
from asmlib import Asm
def f2u(x): return struct.unpack("<I", struct.pack("<f", x))[0]
KB = 88
H_OFF = 0; WDF = 64*KB*1024; UT = WDF + 16*KB*1024; KR = UT + 0x200000; AT = KR + 0x200000; G_OFF = AT + 0x200000
FE = G_OFF + 0x2000; FWF = FE + 0x2000; FL = FWF + 0x8000; FH = FL + 0x800; FC = FH + 0x800; FG = FC + 0x1000
ST_OFF = G_OFF + 0x10000
WS_SZ = ST_OFF + 0x80000
DPP = "row_mask:0xf bank_mask:0xf"
LOG2E = 1.4426950408889634
OPT = dict(stamps=0, dbg=0, pf=0, sp=12, sp2=24, sx=1, sw=1, hc=0, hr=6, wq=2, ef=60, ost=0, rr=1, rc=2, map=0, pa0=2, pa1=1, pb0=3, sl2=8, pb1=3, pb2=0, pb3=0, sl=2)

def srd(a, d, b, n):
    a(f"s_mov_b32 s{d}, s{b}\ns_mov_b32 s{d+1}, s{b+1}\ns_mov_b32 s{d+2}, {n:#x}\ns_mov_b32 s{d+3}, 0x00020000")

def stamp(a, k):
    if OPT["stamps"]:
        a(f"s_memrealtime s[{70+2*k}:{71+2*k}]")
        if k == 0: a("s_memtime s[64:65]")
def endp(a, kern, srdw, n):
    if OPT["stamps"] == 2:
        a(f"s_waitcnt vmcnt(0)\ns_memrealtime s[{70+2*n}:{71+2*n}]\ns_load_dwordx2 s[68:69], s[0:1], 120\ns_mov_b64 exec, 1\ns_waitcnt lgkmcnt(0)")
        sl = {12: [(15, 0), (7, 1), (8, 4), (9, 6), (10, 7), (11, 8), (12, 10), (13, 11), (14, 12)], 7: [(3, 0), (4, 2), (5, 4), (6, 7)]}.get(n, [])
        if sl:
            a(f"s_cmp_lg_u32 s3, 0\ns_cbranch_scc1 Lst_x{n}\nv_mov_b32 v1, 0\ns_not_b32 s66, s70\nv_mov_b32 v2, s66\nglobal_atomic_umax v1, v2, s[68:69] offset:8 sc1")
            for d, k in sl: a(f"v_mov_b32 v2, s{70+2*k}\nglobal_atomic_umax v1, v2, s[68:69] offset:{4*d} sc1")
            a(f"Lst_x{n}:")
    elif OPT["stamps"]:
        a(f"s_waitcnt vmcnt(0)\ns_memrealtime s[{70+2*n}:{71+2*n}]\ns_memtime s[66:67]\ns_mov_b64 exec, 1\ns_waitcnt lgkmcnt(0)")
        a(f"s_lshl_b32 s68, s2, 2\ns_add_u32 s68, s68, s3\ns_lshl_b32 s68, s68, 6\ns_add_u32 s68, s68, {ST_OFF+kern*0x40000}\nv_mov_b32 v1, 0")
        a(f"s_sub_u32 s66, s66, s64\nv_mov_b32 v2, s66\nbuffer_store_dword v2, v1, s[{srdw}:{srdw+3}], s68 offen offset:60")
        for k in range(n+1): a(f"v_mov_b32 v2, s{70+2*k}\nbuffer_store_dword v2, v1, s[{srdw}:{srdw+3}], s68 offen offset:{4*k}")
    a("s_endpgm")

def interleave(main, fill, every, start=0):
    out = []; fi = 0
    for i, m in enumerate(main):
        out.append(m)
        if i >= start and (i - start) % every == every - 1 and fi < len(fill): out.append(fill[fi]); fi += 1
    out += fill[fi:]
    return out

SPIN = 1 << 20
def tagcheck(a, v, vz, dbg, nm):
    a(f"""
    s_mov_b32 s62, {SPIN}
Ltag_{nm}:
    v_readfirstlane_b32 s60, v{v}
    v_readfirstlane_b32 s61, v{v+1}
    s_sub_u32 s62, s62, 1
    s_cbranch_scc1 Ltag_{nm}_ok
    s_cmp_lg_u32 s60, 0
    s_cbranch_scc1 Ltag_{nm}_ok
    s_sleep 2
    global_load_dwordx2 v[{v}:{v+1}], v{vz}, s[{dbg}:{dbg+1}] sc1
    s_waitcnt vmcnt(0)
    s_branch Ltag_{nm}
Ltag_{nm}_ok:
    """)
def poll(a, v, va, nm, mask, sl=4, w=2):
    a(f"""
    s_mov_b32 s62, {SPIN}
    s_mov_b64 exec, {mask}
    s_branch Lpoll_{nm}_in
Lpoll_{nm}:
    s_sleep {sl}
Lpoll_{nm}_in:
    {f'buffer_load_dwordx2 v[{v}:{v+1}]' if w == 2 else f'buffer_load_dword v{v}'}, v{va}, s[48:51], 0 offen sc1
    s_waitcnt vmcnt(0)
    {f'v_cmp_ne_u64 vcc, s[60:61], v[{v}:{v+1}]' if w == 2 else f'v_cmp_ne_u32 vcc, s60, v{v}'}
    s_sub_u32 s62, s62, 1
    s_cbranch_scc1 Lpoll_{nm}_ok
    s_nop 0
    s_cbranch_vccnz Lpoll_{nm}
Lpoll_{nm}_ok:
    s_mov_b64 exec, -1
    """)
def wflag(a, s):
    a(f"""
    v_mov_b32 v14, s60
    s_mov_b64 exec, 1
    buffer_store_dword v14, v23, s[48:51], s{s} offen sc1
    s_mov_b64 exec, -1
    """)
def check(a, v, va, nm):
    a(f"v_cmp_ne_u64 vcc, s[60:61], v[{v}:{v+1}]\ns_nop 1\ns_cbranch_vccz Lpoll_{nm}_ok")
    poll(a, v, va, nm, -1, OPT['sl2'])
def flag(a, off, nm):
    a(f"""
    s_cmp_lg_u32 s3, 0
    s_cbranch_scc1 Lfl_{nm}
    v_mov_b32 v14, s60
    v_mov_b32 v15, s61
    v_mov_b32 v13, s63
    s_mov_b64 exec, 1
    buffer_store_dwordx2 v[14:15], v13, s[48:51], 0 offen offset:{off} sc1
    s_mov_b64 exec, -1
Lfl_{nm}:
    """)

TS = 8960; C0 = 2*TS; FR = 272; FW = 57*FR
CP = 4160; DSZ = 4*CP + 4608
def cmul(D, X, Y):
    p = lambda r: f"v[{r}:{r+1}]"
    return [f"v_pk_mul_f32 {p(D)}, {p(X)}, {p(Y)} op_sel:[0,0] op_sel_hi:[0,1]",
            f"v_pk_fma_f32 {p(D)}, {p(X)}, {p(Y)}, {p(D)} op_sel:[1,1,0] op_sel_hi:[1,0,1] neg_lo:[1,0,0]"]

def roleb(a):
    stamp(a, 0)
    a(f"s_setprio {OPT['pb0']}")
    a("""
    s_load_dwordx16 s[16:31], s[0:1], 0
    s_load_dwordx2 s[32:33], s[0:1], 96
    s_load_dwordx4 s[36:39], s[0:1], 120
    s_load_dwordx2 s[56:57], s[0:1], 64
    s_memrealtime s[60:61]
    v_lshrrev_b32 v1, 6, v0
    v_and_b32 v2, 63, v0
    v_readfirstlane_b32 s3, v1
    s_lshr_b32 s8, s2, 3
    s_and_b32 s9, s2, 7
    s_lshl_b32 s4, s9, 5
    s_add_u32 s4, s4, s8
    s_lshl_b32 s63, s4, 3
    s_lshl_b32 s5, s4, 9
    v_lshrrev_b32 v3, 1, v0
    v_lshl_add_u32 v3, v3, 2, s5
    s_lshl_b32 s7, s4, 2
    s_lshr_b32 s5, s3, 1
    v_and_b32 v5, 31, v2
    v_lshrrev_b32 v6, 5, v2
    s_lshl_b32 s11, s8, 16
    s_lshl_b32 s12, s9, 7
    s_add_u32 s11, s11, s12
    s_lshl_b32 s10, s3, 5
    s_add_u32 s11, s11, s10
    s_add_u32 s11, s11, 4096
    v_and_b32 v124, 7, v2
    v_lshrrev_b32 v125, 3, v2
    v_lshlrev_b32 v7, 13, v124
    v_lshl_add_u32 v7, v125, 2, v7
    v_add_u32 v7, s11, v7
    s_lshl_b32 s13, s2, 2
    s_add_u32 s13, s13, s3
    s_lshl_b32 s10, s8, 2
    s_add_u32 s10, s10, s3
    s_lshl_b32 s40, s10, 14
    s_add_u32 s40, s40, s12
    v_lshlrev_b32 v8, 10, v125
    v_lshl_add_u32 v8, v124, 4, v8
    v_add_u32 v8, s40, v8
    v_add_u32 v9, 0x2000, v8
    v_lshlrev_b32 v10, 4, v2
    v_mov_b32 v23, 0
    s_waitcnt lgkmcnt(0)
    """)
    a(f"s_add_u32 s63, s63, {FL}")
    srd(a, 40, 32, 1376*1024)
    srd(a, 48, 38, WS_SZ)
    a("""
    s_cmp_lg_u32 s13, 0
    s_cbranch_scc1 Lb_notag
    s_or_b32 s60, s60, 1
    v_mov_b32 v14, s60
    v_mov_b32 v15, s61
    s_mov_b64 exec, 1
    global_store_dwordx2 v23, v[14:15], s[36:37] sc1
    s_mov_b64 exec, -1
Lb_notag:
    """)
    if OPT.get("nob"): a("s_endpgm")
    for i in range(8): a(f"global_load_dword v{32+i}, v7, s[16:17] offset:{(i-4)*1024}")
    for i in range(6): a(f"global_load_dword v{16+i}, v3, s[{18+2*i}:{19+2*i}]")
    a("""
    s_load_dword s58, s[30:31], s7
    s_load_dword s59, s[56:57], s7
    s_lshl_b32 s15, s3, 11
    s_mov_b32 m0, s15
    buffer_load_dwordx4 v8, s[40:43], 0 offen lds
    s_add_u32 m0, s15, 1024
    buffer_load_dwordx4 v9, s[40:43], 0 offen lds
    """)
    a(f"s_setprio {OPT['pb1']}")
    npf = 0
    a(f"""
    v_and_b32 v12, 15, v2
    v_and_b32 v13, 7, v12
    v_lshrrev_b32 v14, 3, v12
    v_lshl_add_u32 v60, v14, 7, v13
    v_lshrrev_b32 v14, 2, v12
    v_lshlrev_b32 v14, 7, v14
    v_and_b32 v15, 3, v12
    v_lshl_add_u32 v14, v15, 1, v14
    v_add_u32 v14, 0x100, v14
    v_lshrrev_b32 v15, 1, v13
    v_lshlrev_b32 v15, 7, v15
    v_and_b32 v61, 1, v12
    v_lshl_add_u32 v15, v61, 2, v15
    v_add_u32 v15, 0x200, v15
    v_cmp_gt_u32 vcc, 8, v12
    v_cndmask_b32 v61, v15, v14, vcc
    s_and_b32 s6, s3, 1
    s_cmp_eq_u32 s6, 0
    s_cselect_b64 vcc, -1, 0
    v_cndmask_b32 v60, v61, v60, vcc
    v_min_u32 v67, 8, v12
    v_lshlrev_b32 v62, 7, v67
    v_add_u32 v62, 0x400, v62
    v_lshrrev_b32 v13, 4, v2
    v_lshlrev_b32 v14, 5, v13
    v_add_u32 v14, v14, v6
    v_lshrrev_b32 v15, 6, v60
    v_add3_u32 v60, v60, v15, v14
    v_lshrrev_b32 v15, 6, v62
    v_add3_u32 v62, v62, v15, v14
    s_mul_i32 s44, s5, {TS}
    v_lshl_add_u32 v60, v60, 2, s44
    v_lshl_add_u32 v62, v62, 2, s44
    s_mul_i32 s44, s3, {FW}
    s_add_u32 s44, s44, {C0}
    v_lshl_add_u32 v63, v2, 2, s44
    s_mul_i32 s44, s5, {2*FW}
    s_add_u32 s44, s44, {C0}
    v_lshl_add_u32 v14, v13, 4, s44
    v_mul_u32_u24 v15, {FR}, v12
    v_add_u32 v64, v14, v15
    s_mul_i32 s44, s6, {16*FR}
    v_add_u32 v65, s44, v64
    v_mul_u32_u24 v15, {FR}, v67
    v_add_u32 v66, v14, v15
    s_mov_b32 s52, 0x05040100
    s_mov_b32 s53, 0x07060302
    s_mov_b32 s54, 0xffff0000
    """)
    a("v_lshlrev_b32 v14, 5, v0\nv_sub_u32 v14, 8188, v14")
    for jj in range(12): a(f"v_subrev_u32 v{128+jj}, {4*jj}, v14\nv_max_i32 v{128+jj}, 0, v{128+jj}\nv_cvt_f32_u32 v{128+jj}, v{128+jj}")
    for p in range(6):
        x = 128 + 2*p
        a(f"""
        v_cvt_pk_bf16_f32 v{x}, v{x}, v{x+1}
        v_and_b32 v{x+1}, s54, v{x}
        v_lshlrev_b32 v{x}, 16, v{x}
        v_cvt_u32_f32 v{x+1}, v{x+1}
        v_cvt_u32_f32 v{x}, v{x}
        v_lshrrev_b32 v14, 8, v{x+1}
        v_lshrrev_b32 v15, 8, v{x}
        v_lshl_add_u32 v{x+1}, v14, 2, v{x+1}
        v_lshl_add_u32 v{x}, v15, 2, v{x}
        """)
    a(f"""
    v_and_b32 v68, 15, v2
    v_lshrrev_b32 v69, 4, v2
    v_sub_u32 v70, 3, v68
    v_and_b32 v70, 3, v70
    v_sub_u32 v71, 2031, v68
    v_lshl_add_u32 v71, v69, 3, v71
    v_sub_u32 v71, v71, v70
    v_lshlrev_b32 v71, 1, v71
    v_mul_u32_u24 v70, {CP}, v70
    v_add_u32 v71, v71, v70
    s_mul_i32 s12, s5, {DSZ}
    s_add_u32 s12, s12, {C0}
    s_lshl_b32 s44, s6, 8
    s_sub_u32 s44, s12, s44
    s_sub_u32 s45, s44, {512*7+192}
    v_add_u32 v120, s45, v71
    v_lshlrev_b32 v70, 5, v68
    v_lshl_add_u32 v121, v69, 4, v70
    s_add_u32 s45, s44, {4*CP+480-192}
    v_add_u32 v121, s45, v121
    v_lshl_add_u32 v122, v69, 3, v70
    v_and_b32 v68, 31, v0
    v_lshlrev_b32 v123, 4, v68
    v_add_u32 v123, {4*CP}, v123
    v_bfe_u32 v70, v0, 5, 1
    v_mul_u32_u24 v70, {DSZ}, v70
    v_add_u32 v123, v123, v70
    v_and_b32 v70, 3, v0
    v_lshlrev_b32 v70, 4, v70
    v_bfe_u32 v71, v0, 2, 2
    v_mul_u32_u24 v71, {CP}, v71
    v_add_u32 v70, v70, v71
    v_bfe_u32 v71, v0, 4, 1
    v_mul_u32_u24 v71, {DSZ}, v71
    v_add_u32 v70, v70, v71
    v_add_u32 v70, 0x1000, v70
    v_cmp_gt_u32 vcc, 64, v0
    v_cndmask_b32 v123, v70, v123, vcc
    v_mov_b32 v52, 0
    v_mov_b32 v53, 0
    v_mov_b32 v54, 0
    v_mov_b32 v55, 0
    s_lshl_b32 s44, s9, 2
    s_lshr_b32 s45, s8, 3
    s_add_u32 s45, s45, s44
    s_lshl_b32 s45, s45, 7
    s_add_u32 s14, s45, {FE}
    v_lshl_add_u32 v126, v5, 2, s14
    s_add_u32 s55, s44, s3
    s_lshl_b32 s55, s55, 5
    s_add_u32 s55, s55, s8
    s_lshl_b32 s55, s55, 2
    s_add_u32 s55, s55, {FE}
    s_lshl_b32 s44, s9, 18
    s_lshl_b32 s45, s8, 7
    s_add_u32 s44, s44, s45
    s_lshl_b32 s45, s3, 16
    s_add_u32 s44, s44, s45
    s_add_u32 s44, s44, {UT}
    v_lshlrev_b32 v7, 13, v125
    v_lshl_add_u32 v7, v124, 4, v7
    v_add_u32 v127, 0x1000, v7
    v_bfe_u32 v8, v2, 2, 2
    v_lshl_add_u32 v8, v6, 2, v8
    v_lshlrev_b32 v8, 7, v8
    v_bfe_u32 v9, v2, 4, 1
    v_lshl_add_u32 v8, v9, 5, v8
    v_and_b32 v9, 3, v2
    v_lshl_add_u32 v8, v9, 3, v8
    v_add_u32 v8, s15, v8
    s_mul_i32 s45, s9, {2*KB}
    s_add_u32 s45, s45, s10
    s_lshl_b32 s45, s45, 10
    s_add_u32 s45, s45, {WDF}
    s_add_u32 s46, s45, {KB*1024}
    s_lshl_b32 s11, s9, 7
    s_add_u32 s11, s11, s10
    s_lshl_b32 s11, s11, 2
    s_add_u32 s11, s11, {FC}
    v_and_b32 v9, 1, v2
    v_xor_b32 v9, 1, v9
    v_lshlrev_b32 v9, 4, v9
    s_waitcnt lgkmcnt(0)
    s_lshl_b32 s15, s5, 4
    s_lshr_b32 s58, s58, s15
    s_lshl_b32 s58, s58, 16
    s_lshr_b32 s59, s59, s15
    s_lshl_b32 s59, s59, 16
    v_mov_b32 v5, s59
    v_mov_b32 v22, s58
    v_mul_f32 v22, {f2u(LOG2E):#x}, v22
    v_exp_f32 v22, v22
    s_waitcnt vmcnt(2)
    """)
    stamp(a, 1)
    if OPT.get("x1"): a("s_endpgm")
    def ustores():
        for e, sel in ((0, 52), (1, 53)):
            for i in range(4): a(f"v_perm_b32 v{140+4*e+i}, v{33+2*i}, v{32+2*i}, s{sel}")
        a("s_setprio 3")
        a("buffer_store_dwordx4 v[140:143], v7, s[48:51], s44 offen sc1\nbuffer_store_dwordx4 v[144:147], v127, s[48:51], s44 offen sc1")
    ustores()
    lo = f"s_setprio {OPT['pb1']}"
    a("global_load_dwordx2 v[156:157], v23, s[36:37]")
    a(lo)
    for i in range(6): a(f"v_lshlrev_b32 v{16+i}, v9, v{16+i}\nv_and_b32 v{16+i}, s54, v{16+i}")
    a(f"""
    v_cvt_pk_bf16_f32 v22, v22, v22
    v_lshlrev_b32 v22, 16, v22
    v_mul_f32 v16, v16, v22
    v_mul_f32 v17, v17, v22
    v_mul_f32 v18, v18, v22
    v_mul_f32 v19, v19, v22
    v_mul_f32 v24, {f2u(LOG2E):#x}, v16
    v_mul_f32 v27, 0.15915494, v17
    v_mul_f32 v25, 0x41000000, v24
    v_mul_f32 v26, 0x43000000, v24
    v_mul_f32 v28, 0x41000000, v27
    v_mul_f32 v29, 0x43000000, v27
    v_fract_f32 v27, v27
    v_fract_f32 v28, v28
    v_fract_f32 v29, v29
    v_exp_f32 v24, v24
    v_cos_f32 v82, v27
    v_sin_f32 v83, v27
    v_exp_f32 v25, v25
    v_cos_f32 v96, v28
    v_sin_f32 v97, v28
    v_exp_f32 v26, v26
    v_cos_f32 v98, v29
    v_sin_f32 v99, v29
    v_mul_f32 v100, v20, v18
    v_fma_f32 v100, -v21, v19, v100
    v_mul_f32 v101, v20, v19
    v_fma_f32 v101, -v21, v18, -v101
    v_mul_f32 v82, v82, v24
    v_mul_f32 v83, v83, v24
    v_mul_f32 v96, v96, v25
    v_mul_f32 v97, -v97, v25
    v_mul_f32 v98, v98, v26
    v_mul_f32 v99, v99, v26
    v_mov_b32 v112, 0x3f80
    ds_write_b32 v63, v112 offset:{16*FR}
    """)
    tmp = [0]
    def put(src, row):
        t = 113 + tmp[0] % 7; tmp[0] += 1
        return [f"v_cvt_pk_bf16_f32 v{t}, v{src}, v{src+1}", f"ds_write_b32 v63, v{t} offset:{row*FR}"]
    W = lambda j: 80 + 2*j
    cA = put(W(1), 17)
    for j in range(2, 8): cA += cmul(W(j), W(j//2), W(j - j//2)) + put(W(j), 16 + j)
    cB = put(100, 0)
    for m in range(1, 16): cB += cmul(100 + 2*(m & 1), 100 + 2*((m-1) & 1), 96) + put(100 + 2*(m & 1), m)
    def hrow(i):
        if i == 1: return 24, [(j, 24 + j) for j in range(1, 8)]
        if i < 4: return 32 + 4*(i-2), [(2*j, 32 + 4*(i-2) + j) for j in range(1, 4)]
        if i < 8: return 40 + 2*(i-4), [(4, 41 + 2*(i-4))]
        return 48 + i - 8, []
    cC = []; pc = 0
    for i in range(1, 17):
        h = 98 if i == 1 else 104 + 2*(i & 1)
        if i > 1: cC += cmul(h, 98 if i == 2 else 104 + 2*((i-1) & 1), 98)
        row, prods = hrow(i)
        cC += put(h, row)
        for j, rw in prods:
            d = 108 + 2*(pc & 1); pc += 1
            cC += cmul(d, h, W(j)) + put(d, rw)
    main = cA + cC
    seq = interleave(main, cB, 2)
    cur = {}; k = 0; out = []
    for t in seq:
        m = re.match(r"v_cvt_pk_bf16_f32 v(\d+), v(\d+)", t)
        if m:
            n = 113 + k % 7; k += 1; cur[(m.group(1), t in cB)] = n
            t = t.replace(f"f32 v{m.group(1)},", f"f32 v{n},", 1)
        m = re.match(r"ds_write_b32 v63, v(\d+) offset:(\d+)", t)
        if m: t = f"ds_write_b32 v63, v{cur[(m.group(1), int(m.group(2)) < 16*FR)]} offset:{m.group(2)}"
        out.append(t)
    ksp = len(out) * OPT['ef'] // 100
    for t in out[:ksp]: a(t)
    a("s_setprio 3\ns_waitcnt vmcnt(0)")
    tagcheck(a, 156, 23, 36, "b")
    wflag(a, 55)
    for t in range(2):
        for k in range(2): a(f"ds_read_b64_tr_b16 v[{148+4*t+2*k}:{149+4*t+2*k}], v8 offset:{1024*k+64*t}")
    a(lo)
    for t in out[ksp:]: a(t)
    stamp(a, 2)
    a("s_waitcnt lgkmcnt(0)\ns_barrier")
    stamp(a, 3)
    if OPT.get("x3"): a("s_endpgm")
    for s in range(8):
        o = (s >> 2)*FW + (s & 3)*64
        a(f"ds_read_b128 v[{160+12*s}:{163+12*s}], v64 offset:{o}")
        a(f"ds_read_b128 v[{164+12*s}:{167+12*s}], v65 offset:{o+16*FR}")
        a(f"ds_read_b128 v[{168+12*s}:{171+12*s}], v66 offset:{o+48*FR}")
    a(f"""
    s_cmp_ge_u32 s10, {KB}
    s_cbranch_scc1 Lb_nowd
    s_setprio 3
    buffer_store_dwordx4 v[148:151], v10, s[48:51], s45 offen sc1
    buffer_store_dwordx4 v[152:155], v10, s[48:51], s46 offen sc1
    {lo}
Lb_nowd:
    """)
    for s in range(8):
        b = 160 + 12*s
        a(f"s_waitcnt lgkmcnt({min(15, 3*(7-s))})")
        a(f"v_mfma_f32_16x16x32_bf16 v[68:71], v[{b}:{b+3}], v[{b+4}:{b+7}], {'v[68:71]' if s else 0}")
        a(f"v_mfma_f32_16x16x32_bf16 v[72:75], v[{b}:{b+3}], v[{b+8}:{b+11}], {'v[72:75]' if s else 0}")
    for i in range(4): a(f"ds_write_b32 v60, v{68+i} offset:{32*i}\nds_write_b32 v62, v{72+i} offset:{32*i}")
    def eload():
        a("s_load_dwordx16 s[16:31], s[48:49], s14 glc\ns_load_dwordx16 s[32:47], s[48:49], s15 glc")
    def etest():
        for i in range(16): a(f"s_xor_b64 s[{16+2*i}:{17+2*i}], s[{16+2*i}:{17+2*i}], s[58:59]")
        for st in (2, 4, 8, 16):
            for i in range(16, 48, 2*st): a(f"s_or_b64 s[{i}:{i+1}], s[{i}:{i+1}], s[{i+st}:{i+st+1}]")
    def uissue():
        a(f"""
        s_setprio 3
        s_add_u32 s44, s56, {UT}
        s_add_u32 s45, s56, {UT+4096}
        buffer_load_dwordx4 v[56:59], v3, s[48:51], s44 offen
        buffer_load_dwordx4 v[100:103], v3, s[48:51], s45 offen
        """)
    def uload():
        a(f"s_cmp_eq_u32 s57, 0\ns_cbranch_scc1 Lu_done\ns_waitcnt lgkmcnt(0)\ns_mov_b32 s62, {OPT['sp']}\nLse:")
        eload()
        a("s_waitcnt lgkmcnt(0)")
        etest()
        a("s_cbranch_scc0 Lpoll_e_ok\ns_sleep 2\ns_sub_u32 s62, s62, 1\ns_cbranch_scc0 Lse")
        poll(a, 156, 126, "e", -1, OPT['sl2'], 1)
        uissue()
        a(f"""
Lu_done:
        s_setprio 3
        s_mov_b32 s46, s56
        s_and_b32 s30, s8, 7
        s_lshl_b32 s22, s30, 9
        s_mul_i32 s23, s3, 88
        s_add_u32 s22, s22, s23
        s_add_u32 s22, s22, {FC}
        s_load_dwordx2 s[20:21], s[0:1], 112
        """)
    a("s_mov_b32 s58, s60\ns_mov_b32 s59, s60\ns_add_u32 s15, s14, 64\ns_lshl_b32 s56, s4, 13")
    eload()
    a("v_lshlrev_b32 v3, 4, v0")
    a("s_waitcnt lgkmcnt(0)\ns_barrier")
    stamp(a, 4)
    for jj in range(11): a(f"ds_read2st64_b32 v[{160+2*jj}:{161+2*jj}], v{128+jj} offset0:0 offset1:{TS//256}")
    etest()
    a("s_cselect_b32 s57, 1, 0\ns_cbranch_scc1 Lu_early")
    uissue()
    a(lo + "\nLu_early:")
    a(f"""
    ds_write_b128 v123, v[52:55] offset:{C0}
    v_cmp_eq_u32 vcc, 255, v0
    s_waitcnt lgkmcnt(1)
    """)
    for dd in range(2):
        b = 16 + 8*dd; q = 192 + 16*dd
        for p in range(6): a(f"v_cvt_pk_bf16_f32 v{b+p}, v{160+4*p+dd}, v{160+min(4*p+2, 20)+dd}")
        a(f"v_cndmask_b32 v{b+4}, v{b+4}, v52, vcc\nv_cndmask_b32 v{b+5}, v{b+5}, v52, vcc")
        a(f"ds_write_b128 v3, v[{b}:{b+3}] offset:{C0+dd*DSZ}")
        for i in range(4): a(f"v_alignbit_b32 v{q+4+i}, v{b+i+1}, v{b+i}, 16")
        for i in range(4): a(f"v_mov_b32 v{q+8+i}, v{b+i+1}")
        for i in range(4): a(f"v_alignbit_b32 v{q+12+i}, v{b+i+2}, v{b+i+1}, 16")
        for sg in range(1, 4): a(f"ds_write_b128 v3, v[{q+4*sg}:{q+3+4*sg}] offset:{C0+dd*DSZ+sg*CP}")
        if OPT["dbg"]: a(f"s_add_u32 s44, s56, {KR+4096*dd}\nbuffer_store_dwordx4 v[{b}:{b+3}], v3, s[48:51], s44 offen")
    if OPT.get("x5"): a("s_endpgm")
    uload()
    stamp(a, 5)
    a(f"""
    v_mov_b32 v10, v120
    v_mov_b32 v11, v121
    v_mov_b32 v12, v122
    s_waitcnt vmcnt(0)
    ds_write_b128 v3, v[56:59] offset:{C0+4*CP+512}
    ds_write_b128 v3, v[100:103] offset:{C0+DSZ+4*CP+512}
    """)
    wflag(a, 11)
    a("s_waitcnt lgkmcnt(0)\ns_barrier")
    stamp(a, 6)
    a(f"s_setprio {OPT['pb2']}")
    if OPT.get("noc"): a("s_endpgm")
    conv(a)
    gemm2(a)

def rolec(a):
    a("""
    s_load_dwordx2 s[16:17], s[0:1], 0
    s_load_dwordx4 s[32:35], s[0:1], 96
    s_load_dwordx4 s[36:39], s[0:1], 120
    v_lshrrev_b32 v1, 6, v0
    v_and_b32 v2, 63, v0
    v_readfirstlane_b32 s3, v1
    s_sub_u32 s4, s2, 496
    s_lshl_b32 s4, s4, 2
    s_add_u32 s4, s4, s3
    v_lshlrev_b32 v10, 4, v2
    v_mov_b32 v23, 0
    s_mov_b32 s54, 0xffff0000
    s_waitcnt lgkmcnt(0)
    """)
    srd(a, 48, 38, WS_SZ)
    a(f"""
    s_lshl_b32 s13, s4, 15
    v_lshlrev_b32 v11, 7, v2
    v_add_u32 v12, s13, v11
    v_add_u32 v11, s13, v10
    """)
    a("global_load_dwordx4 v[48:51], v10, s[34:35]")
    for i in range(4): a(f"global_load_dword v{26+i}, v12, s[16:17]\nv_add_u32 v12, 0x2000, v12")
    for r in range(4): a(f"global_load_dwordx4 v[{80+4*r}:{83+4*r}], v11, s[16:17] offset:{1024*r}")
    for i in range(4): a(f"v_lshlrev_b32 v{52+2*i}, 16, v{48+i}\nv_and_b32 v{53+2*i}, s54, v{48+i}") if False else None
    a("s_waitcnt vmcnt(0)")
    for i in range(4): a(f"v_lshlrev_b32 v{52+2*i}, 16, v{48+i}\nv_and_b32 v{53+2*i}, s54, v{48+i}")
    a(f"s_lshl_b32 s15, s4, 7\ns_add_u32 s15, s15, {G_OFF}\ns_mov_b64 s[20:21], 0x1111\nv_mov_b32 v21, 0\ns_mov_b32 s18, 8\nLc_loop:\ns_waitcnt vmcnt(0)")
    for r in range(16): a(f"v_mov_b32 v{64+r}, v{80+r}")
    a("v_add_u32 v11, 0x1000, v11\ns_cmp_eq_u32 s18, 1\ns_cbranch_scc1 Lc_nold")
    for r in range(4): a(f"global_load_dwordx4 v[{80+4*r}:{83+4*r}], v11, s[16:17] offset:{1024*r}")
    a("Lc_nold:")
    for r in range(4): a(f"v_mov_b32 v{32+r}, 0")
    for i in range(4):
        T = lambda r: 36 + 2*r
        for r in range(4): a(f"v_lshlrev_b32 v{T(r)}, 16, v{64+4*r+i}\nv_and_b32 v{T(r)+1}, s54, v{64+4*r+i}")
        for r in range(4): a(f"v_pk_mul_f32 v[{T(r)}:{T(r)+1}], v[{T(r)}:{T(r)+1}], v[{52+2*i}:{53+2*i}]")
        for r in range(4): a(f"v_cvt_pk_bf16_f32 v{T(r)}, v{T(r)}, v{T(r)+1}")
        for r in range(4): a(f"v_and_b32 v{T(r)+1}, s54, v{T(r)}\nv_lshlrev_b32 v{T(r)}, 16, v{T(r)}")
        for r in range(4): a(f"v_add_f32 v{32+r}, v{32+r}, v{T(r)+1}")
        for r in range(4): a(f"v_add_f32 v{32+r}, v{32+r}, v{T(r)}")
    for sh in (8, 4, 2, 1):
        for r in range(4): a(f"v_add_f32_dpp v{32+r}, v{32+r}, v{32+r} row_ror:{sh} {DPP}")
    for r in range(1, 4): a(f"v_mov_b32_dpp v32, v{32+r} quad_perm:[0,1,2,3] row_mask:0xf bank_mask:{1<<r:#x}")
    a(f"""
    v_mov_b32 v33, v32
    v_permlane16_swap_b32 v32, v33
    v_add_f32 v32, v32, v33
    v_mov_b32 v33, v32
    v_permlane32_swap_b32 v32, v33
    s_mov_b64 exec, s[20:21]
    v_add_f32 v21, v32, v33
    s_mov_b64 exec, -1
    s_lshl_b64 s[20:21], s[20:21], 16
    s_cselect_b64 s[20:21], s[20:21], 0x2222
    s_sub_u32 s18, s18, 1
    s_cmp_lg_u32 s18, 0
    s_cbranch_scc1 Lc_loop
    v_and_b32 v20, 60, v2
    v_and_b32 v22, 1, v2
    v_lshl_add_u32 v20, v22, 6, v20
    v_cvt_pk_bf16_f32 v32, v21, v21
    v_lshlrev_b32 v32, 16, v32
    v_mul_f32 v32, {f2u(-LOG2E):#x}, v32
    v_exp_f32 v32, v32
    v_add_f32 v32, 1.0, v32
    v_rcp_f32 v32, v32
    v_cvt_pk_bf16_f32 v32, v32, v32
    v_lshlrev_b32 v32, 16, v32
    s_mov_b32 exec_lo, 0x33333333
    s_mov_b32 exec_hi, 0x33333333
    buffer_store_dword v32, v20, s[48:51], s15 offen sc1
    global_load_dwordx2 v[24:25], v23, s[36:37] sc1
    s_waitcnt vmcnt(0)
    """)
    tagcheck(a, 24, 23, 36, "c")
    a(f"""
    s_lshl_b32 s14, s4, 3
    s_add_u32 s14, s14, {FG}
    s_mov_b64 exec, 1
    buffer_store_dwordx2 v[24:25], v23, s[48:51], s14 offen sc1
    s_endpgm
    """)
def gemm1(a):
    WB = 32768
    stamp(a, 0)
    a(f"s_setprio {OPT['pa0']}")
    a("""
    s_load_dwordx2 s[16:17], s[0:1], 0
    s_load_dwordx4 s[20:23], s[0:1], 80
    s_load_dwordx4 s[24:27], s[0:1], 120
    v_lshrrev_b32 v56, 6, v0
    v_and_b32 v57, 63, v0
    v_readfirstlane_b32 s3, v56
    s_and_b32 s4, s2, 7
    s_sub_u32 s5, s2, 256
    s_lshr_b32 s5, s5, 3
    """)
    if OPT["map"] == 0: a("""
    s_mul_i32 s4, s4, 30
    s_add_u32 s4, s4, s5
    s_cmp_ge_u32 s4, 120
    s_cselect_b32 s5, 8, 0
    s_cselect_b32 s6, 120, 0
    s_sub_u32 s4, s4, s6
    s_lshr_b32 s6, s4, 3
    s_and_b32 s4, s4, 7
    s_add_u32 s5, s5, s4
    """)
    else: a("""
    s_cmp_ge_u32 s5, 15
    s_cselect_b32 s6, 15, 0
    s_cselect_b32 s9, 1, 0
    s_sub_u32 s6, s5, s6
    s_lshl_b32 s4, s4, 1
    s_add_u32 s5, s9, s4
    """)
    a("""
    s_lshr_b32 s7, s3, 1
    s_and_b32 s8, s3, 1
    """)
    a(f"""
    s_lshl_b32 s9, s5, 17
    s_lshl_b32 s10, s3, 15
    s_add_u32 s9, s9, s10
    v_lshrrev_b32 v58, 3, v57
    v_lshlrev_b32 v58, 10, v58
    v_add_u32 v58, s9, v58
    v_lshrrev_b32 v59, {3 if OPT['sx'] else 4}, v57
    v_and_b32 v60, 7, v57
    v_xor_b32 v61, v60, v59
    v_lshl_add_u32 v11, v61, 4, v58
    v_xor_b32 v61, {1 if OPT['sx'] else 4}, v61
    v_lshl_add_u32 v12, v61, 4, v58
    v_add_u32 v12, 0x2000, v12
    v_add_u32 v13, 0x4000, v11
    v_add_u32 v14, 0x4000, v12
    s_mul_i32 s9, s8, 192
    s_mul_i32 s10, s6, 192
    s_lshl_b32 s11, s7, 1
    """)
    for qq in range(3):
        a(f"""
        v_add_u32 v58, s9, v57
        v_add_u32 v58, {64*qq}, v58
        v_mul_u32_u24 v60, 43691, v58
        v_lshrrev_b32 v60, 19, v60
        v_mul_u32_u24 v61, 12, v60
        v_sub_u32 v61, v58, v61
        v_xor_b32 v61, s11, v61
        v_and_b32 v58, {2 if OPT['sw'] else 0}, v60
        v_xor_b32 v61, v58, v61
        v_mul_u32_u24 v60, 2752, v60
        v_lshl_add_u32 v60, v61, 4, v60
        v_add_u32 v{8+qq}, s10, v60
        """)
    a("s_waitcnt lgkmcnt(0)")
    srd(a, 28, 16, 2048*1024)
    a("s_cmp_eq_u32 s7, 0\ns_cselect_b32 s32, s20, s22\ns_cselect_b32 s33, s21, s23\ns_mov_b32 s34, 1409024\ns_mov_b32 s35, 0x00020000")
    srd(a, 36, 26, WS_SZ)
    a(f"""
    s_lshl_b32 s12, s3, 12
    s_mul_i32 s13, s3, 3072
    s_add_u32 s13, s13, {WB}
    s_mul_i32 s14, s5, {OPT['rr']}
    s_mul_i32 s15, s6, {OPT['rc']}
    s_add_u32 s14, s14, s15
    s_and_b32 s14, s14, 7
    s_mul_i32 s15, s14, {64*2752}
    s_lshl_b32 s14, s14, 7
    """)
    def dma_x(slot):
        L = []
        for qq in range(4):
            L.append(f"s_add_u32 m0, s12, {slot*16384+qq*1024}\nbuffer_load_dwordx4 v{11+qq}, s[28:31], s14 offen lds")
        L[-1] += "\ns_add_u32 s14, s14, 128\ns_and_b32 s14, s14, 1023"
        return L
    def dma_w(slot):
        L = []
        for qq in range(3):
            L.append(f"s_add_u32 m0, s13, {slot*12288+qq*1024}\nbuffer_load_dwordx4 v{8+qq}, s[32:35], s15 offen lds")
        L[-1] += f"\ns_add_u32 s15, s15, {32*2752}\ns_cmp_eq_u32 s15, {512*2752}\ns_cselect_b32 s15, 0, s15"
        return L
    if OPT["pf"] == 1:
        a("""
        s_and_b32 s9, s5, 7
        s_mul_i32 s9, s9, 176128
        s_mul_i32 s10, s6, 192
        s_add_u32 s9, s9, s10
        s_lshl_b32 s10, s8, 7
        s_add_u32 s9, s9, s10
        v_mul_u32_u24 v58, 2752, v57
        buffer_load_dword v160, v58, s[32:35], s9 offen
        s_and_b32 s9, s6, 3
        s_lshl_b32 s9, s9, 8
        s_lshl_b32 s10, s7, 7
        s_add_u32 s9, s9, s10
        s_lshl_b32 s10, s5, 17
        s_add_u32 s9, s9, s10
        v_and_b32 v58, 127, v0
        v_lshlrev_b32 v58, 10, v58
        buffer_load_dword v161, v58, s[28:31], s9 offen
        """)
    if OPT.get("g1twice"): a("s_mov_b32 s60, 2\nLg1_tw:\ns_barrier\ns_mov_b32 s14, 0\ns_mov_b32 s15, 0")
    for t in dma_x(0) + dma_w(0): a(t)
    for t in dma_w(1): a(t)
    a(f"""
    v_and_b32 v58, 31, v57
    v_lshrrev_b32 v59, 5, v57
    {'v_bfe_u32 v60, v58, 3, 1' if OPT['sx'] else 'v_lshrrev_b32 v60, 1, v58'}
    {'v_xor_b32 v60, v60, v58' if OPT['sx'] else ''}
    v_and_b32 v60, 7, v60
    v_xor_b32 v60, v60, v59
    s_lshl_b32 s9, s7, 13
    v_lshlrev_b32 v58, 7, v58
    v_add_u32 v58, s9, v58
    """)
    for ks in range(4): a(f"v_xor_b32 v61, {2*ks}, v60\nv_lshl_add_u32 v{4+ks}, v61, 4, v58")
    a(f"""
    v_bfe_u32 v58, v57, 4, 1
    v_bfe_u32 v60, v57, 2, 2
    v_lshl_add_u32 v60, v59, 3, v60
    v_mul_u32_u24 v60, 192, v60
    v_mul_u32_u24 v61, 6144, v58
    v_add_u32 v60, v60, v61
    v_and_b32 v61, 3, v57
    v_lshl_add_u32 v60, v61, 3, v60
    v_add_u32 v60, {WB}, v60
    s_mul_i32 s9, s8, 3
    v_bfe_u32 v61, v57, 3, {1 if OPT['sw'] else 0}
    v_xor_b32 v58, v58, v61
    """)
    for tt in range(3):
        a(f"s_add_u32 s10, s9, {tt}\nv_xor_b32 v61, s10, v58\nv_lshl_add_u32 v{1+tt}, v61, 5, v60")
    a("v_lshlrev_b32 v15, 4, v57")
    F = [(16, 28), (36, 48)]
    def reads(f, s, ks):
        wb, xb = F[f]; L = []
        xo = ((s >> 1) & 1) * 16384; ks4 = (s & 1) * 2 + ks
        wo = (s & 3) * 12288 + ks * 3072
        L.append(f"ds_read_b128 v[{xb}:{xb+3}], v{4+ks4} offset:{xo}")
        for tt in range(3):
            L.append(f"ds_read_b64_tr_b16 v[{wb+4*tt}:{wb+4*tt+1}], v{1+tt} offset:{wo}")
            L.append(f"ds_read_b64_tr_b16 v[{wb+4*tt+2}:{wb+4*tt+3}], v{1+tt} offset:{wo+768}")
        L.append(f"ds_read_b128 v[{xb+4}:{xb+7}], v{4+ks4} offset:{xo+4096}")
        return L
    def mfmas(f, z=False):
        wb, xb = F[f]; L = []
        for mt in range(2):
            for tt in range(3):
                c = 64 + 16*(2*tt+mt)
                L.append(f"v_mfma_f32_32x32x16_bf16 v[{c}:{c+15}], v[{wb+4*tt}:{wb+4*tt+3}], v[{xb+4*mt}:{xb+4*mt+3}], " + ("0" if z else f"v[{c}:{c+15}]"))
        if OPT.get("g1nomfma"): L = ["s_nop 0"]*6
        return L
    stamp(a, 1)
    a(f"s_setprio {OPT['pa1']}")
    a("s_waitcnt vmcnt(3)\ns_barrier")
    stamp(a, 2)
    for t in reads(0, 0, 0): a(t)
    def stage(s, dma, vm, last=False, da=[], db=None):
        m = mfmas(0, db is not None); r = reads(1, s, 1)
        a("s_waitcnt lgkmcnt(0)")
        for t in [m[0]] + r[0:3] + [m[1]] + r[3:6] + [m[2]] + r[6:8] + m[3:] + da: a(t)
        if last:
            a("s_waitcnt lgkmcnt(0)")
            for t in mfmas(1): a(t)
            return
        a(f"s_waitcnt lgkmcnt(0) vmcnt({vm})\ns_barrier")
        m = mfmas(1); r = reads(0, s+1, 0)
        d = []
        if dma and not OPT.get("g1nodma"):
            if s & 1: d += dma_x((s >> 1) & 1)
            d += dma_w(s & 3)
        if db is not None: d = db
        seq = [m[0]] + r[0:3] + [m[1]] + r[3:6] + [m[2]] + r[6:8] + d[0:1] + [m[3]] + d[1:3] + [m[4]] + d[3:5] + [m[5]] + d[5:]
        for t in seq: a(t)
    stage(0, True, 4, da=dma_x(1), db=dma_w(2) + dma_w(3)); stage(1, True, 6, da=dma_w(0)); stage(2, True, 10); stage(3, True, 6)
    a("s_mov_b32 s40, 2\nLg1_loop:")
    for s in range(4): stage(s, True, 6 if s & 1 else 10)
    a("s_sub_u32 s40, s40, 1\ns_cmp_lg_u32 s40, 0\ns_cbranch_scc1 Lg1_loop")
    stamp(a, 3)
    a("v_mov_b32 v162, 0\nglobal_load_dwordx2 v[160:161], v162, s[24:25]")
    stage(12, False, 11); stage(13, False, 4); stage(14, False, 1); stage(15, False, 0, last=True)
    if OPT.get("g1twice"): a("v_and_b32 v57, 63, v0\ns_nop 15\ns_sub_u32 s60, s60, 1\ns_cmp_lg_u32 s60, 0\ns_cbranch_scc1 Lg1_tw")
    stamp(a, 4)
    c1 = -2*0.7978845608028654*LOG2E; c2 = c1*0.044715
    a(f"""
    v_mov_b32 v56, {f2u(c1):#x}
    v_mov_b32 v57, {f2u(c1):#x}
    v_mov_b32 v58, 1.0
    v_mov_b32 v59, 1.0
    s_mov_b32 s42, {f2u(c2):#x}
    s_mov_b32 s43, {f2u(c2):#x}
    s_lshl_b32 s9, s5, 2
    s_lshl_b32 s10, s7, 1
    s_add_u32 s9, s9, s10
    s_mul_i32 s9, s9, {KB}
    s_mul_i32 s10, s6, 6
    s_mul_i32 s11, s8, 3
    s_add_u32 s10, s10, s11
    s_add_u32 s9, s9, s10
    s_lshl_b32 s9, s9, 10
    s_add_u32 s11, s9, {KB*1024}
    """)
    for tt in range(3):
        a(f"s_cmp_ge_u32 s10, {KB-tt}\ns_cbranch_scc1 Lg1_done")
        for mt in range(2):
            c = 64 + 16*(2*tt+mt); q = 16 + 8*mt; o = 32 + 4*((2*tt+mt) % 4)
            P = lambda b, p: f"v[{b+2*p}:{b+2*p+1}]"
            for p in range(4): a(f"v_pk_mul_f32 {P(q,p)}, {P(c,p)}, {P(c,p)}")
            for p in range(4): a(f"v_pk_fma_f32 {P(q,p)}, {P(q,p)}, s[42:43], v[56:57]")
            for p in range(4): a(f"v_pk_mul_f32 {P(q,p)}, {P(q,p)}, {P(c,p)}")
            for i in range(8): a(f"v_exp_f32 v{q+i}, v{q+i}")
            for p in range(4): a(f"v_pk_mul_f32 {P(c,p)}, {P(c,p)}, {P(c+8,p)}")
            for p in range(4): a(f"v_pk_add_f32 {P(q,p)}, {P(q,p)}, v[58:59]")
            for i in range(8): a(f"v_rcp_f32 v{q+i}, v{q+i}")
            for p in range(4): a(f"v_pk_mul_f32 {P(c,p)}, {P(c,p)}, {P(q,p)}")
            for p in range(4): a(f"v_cvt_pk_bf16_f32 v{o+p}, v{c+2*p}, v{c+2*p+1}")
            a(f"buffer_store_dwordx4 v[{o}:{o+3}], v15, s[36:39], s{9 if mt == 0 else 11} offen offset:{tt*1024} sc1")
    a("Lg1_done:")
    stamp(a, 5)
    a(f"""
    s_lshl_b32 s9, s5, 4
    s_add_u32 s9, s9, s6
    s_lshl_b32 s9, s9, 3
    s_add_u32 s9, s9, {FH}
    s_waitcnt vmcnt(0)
    s_barrier
    """)
    stamp(a, 6)
    a("s_cmp_lg_u32 s3, 0\ns_cbranch_scc1 Lg1_end")
    tagcheck(a, 160, 162, 24, "g1")
    a("s_mov_b64 exec, 1\nbuffer_store_dwordx2 v[160:161], v162, s[36:39], s9 offen sc1")
    a(f"s_lshl_b32 s9, s2, 7\ns_add_u32 s9, s9, {FWF-256*128}\nbuffer_store_dword v160, v162, s[36:39], s9 offen sc1\nLg1_end:")
    endp(a, 0, 36, 7)

def kd(name, vgpr=256):
    return f""".p2align 6
.amdhsa_kernel {name}
  .amdhsa_next_free_vgpr {vgpr}
  .amdhsa_next_free_sgpr 100
  .amdhsa_accum_offset {vgpr}
  .amdhsa_group_segment_fixed_size 0
  .amdhsa_kernarg_size 136
  .amdhsa_user_sgpr_count 2
  .amdhsa_user_sgpr_kernarg_segment_ptr 1
  .amdhsa_system_sgpr_workgroup_id_x 1
.end_amdhsa_kernel
"""
def head(a, name):
    a.raw(f".globl {name}\n.p2align 8\n.type {name},@function"); a.label(name)

def conv(a):
    S = [64, 128]
    def reads(st, qi):
        L = []; b = S[st]
        for p in range(8):
            L.append(f"ds_read_b128 v[{b+32+4*p}:{b+35+4*p}], v11 offset:{512*p+64*(3-qi)}")
            L.append(f"ds_read_b64 v[{b+4*p}:{b+4*p+1}], v10 offset:{512*(7-p)+64*(3-qi)}")
            L.append(f"ds_read_b64 v[{b+4*p+2}:{b+4*p+3}], v10 offset:{512*(7-p)+64*(3-qi)+8}")
        return L
    def mf(qi):
        L = []; b = S[qi & 1]
        for p in range(8):
            for I in range(p, 8):
                c = 192 + 4*I; P = I - p
                L.append(f"v_mfma_f32_16x16x32_bf16 v[{c}:{c+3}], v[{b+4*p}:{b+4*p+3}], v[{b+32+4*P}:{b+35+4*P}], " + ("0" if qi == 0 and p == 0 else f"v[{c}:{c+3}]"))
        return L
    for t in reads(0, 0): a(t)
    g2_addr(a)
    a(f"v_lshlrev_b32 v13, 4, v2\ns_lshl_b32 s31, s3, 12")
    def wload(st):
        L = [f"s_add_u32 s15, s{24+i}, s7\nbuffer_load_dwordx4 v[{WREG[st]+4*i}:{WREG[st]+4*i+3}], v13, s[48:51], s15 offen" for i in range(2)]
        L[-1] += adv(7)
        return L
    def wdma(st):
        L = [f"s_add_u32 m0, s31, {LOFF[st]+1024*i}\ns_add_u32 s15, s{24+i}, s32\nbuffer_load_dwordx4 v13, s[48:51], s15 offen lds" for i in range(2)]
        L[-1] += adv(32)
        return L
    early = sum([wload(st) for st in range(9)], []) + wdma(WR) + wdma(WR+1)
    late = sum([wload(st) for st in range(9, WR)], [])
    a(f"""
    s_mul_i32 s7, s30, {OPT['hc']}
    s_and_b32 s32, s28, 3
    s_mul_i32 s32, s32, {OPT['hr']}
    s_add_u32 s7, s7, s32
    s_cmp_ge_u32 s7, {NS}
    s_cselect_b32 s32, {NS}, 0
    s_sub_u32 s7, s7, s32
    s_add_u32 s32, s7, {WR}
    s_cmp_ge_u32 s32, {NS}
    s_cselect_b32 s33, {NS}, 0
    s_sub_u32 s32, s32, s33
    s_lshl_b32 s7, s7, 10
    s_lshl_b32 s32, s32, 10
    s_mov_b32 s55, s7
    v_min_u32 v9, {NS-1}, v2
    v_lshl_add_u32 v9, v9, 2, s22
    s_add_u32 s22, s22, s48
    s_addc_u32 s23, s49, 0
    """)
    Q = OPT["wq"]
    allw = early + late
    for qi in range(4):
        a("s_waitcnt lgkmcnt(0)")
        if qi == Q - 1:
            for r, n, o in ((36, 8, 0), (16, 4, 32), (96, 4, 48), (44, 2, 64), (34, 2, 72), (56, 2, 80)):
                a(f"s_load_dwordx{n} s[{r}:{r+n-1}], s[22:23], {o}")
        if qi == Q:
            R = [36, 38, 40, 42, 16, 18, 96, 98, 44, 34, 56]
            for r in R: a(f"s_xor_b64 s[{r}:{r+1}], s[{r}:{r+1}], s[58:59]")
            for r in R[1:]: a(f"s_or_b64 s[36:37], s[36:37], s[{r}:{r+1}]")
            a("s_cbranch_scc0 Lpoll_w_ok")
            poll(a, 18, 9, "w", -1, OPT['sl2'], 1)
        nxt = reads((qi+1) & 1, qi+1) if qi < 3 else []
        if qi >= Q:
            n = 12 if qi < 3 else 99
            if qi < 3: n = min(n, len(allw) - len(late))
            nxt = nxt + allw[:n]; allw = allw[n:]
        for t in interleave(mf(qi), nxt, 1): a(t)
    stamp(a, 7)
    RB = C0 + 2*DSZ
    a(f"""
    s_lshl_b32 s14, s3, 12
    s_add_u32 s14, s14, {RB}
    v_add_u32 v14, s14, v13
    s_xor_b32 s15, s3, 1
    s_lshl_b32 s15, s15, 12
    s_add_u32 s15, s15, {RB}
    v_add_u32 v15, s15, v13
    s_lshl_b32 s13, s6, 11
    s_add_u32 s14, s12, s13
    s_add_u32 s14, s14, {4*CP+512}
    v_add_u32 v16, s14, v12
    s_nop 7
    s_cmp_eq_u32 s6, 0
    s_cbranch_scc1 Lc_lo
    """)
    for I in range(4): a(f"ds_write_b128 v14, v[{192+4*I}:{195+4*I}] offset:{1024*I}")
    for r in range(16): a(f"v_mov_b32 v{160+r}, v{208+r}")
    a("s_branch Lc_join\nLc_lo:")
    for I in range(4): a(f"ds_write_b128 v14, v[{208+4*I}:{211+4*I}] offset:{1024*I}")
    for r in range(16): a(f"v_mov_b32 v{160+r}, v{192+r}")
    a("Lc_join:")
    for I in range(4): a(f"ds_read_b64 v[{128+2*I}:{129+2*I}], v16 offset:{512*I}")
    a(f"""
    s_waitcnt lgkmcnt(0)
    s_barrier
    s_lshl_b32 s14, s5, 12
    s_add_u32 s14, s14, s46
    s_add_u32 s14, s14, s13
    s_add_u32 s14, s14, {AT}
    """)
    for I in range(4): a(f"ds_read_b128 v[{176+4*I}:{179+4*I}], v15 offset:{1024*I}")
    for I in range(4):
        for hh in range(2):
            u = 128 + 2*I + hh; f = 160 + 4*I + 2*hh
            a(f"v_lshlrev_b32 v136, 16, v{u}\nv_and_b32 v137, s54, v{u}\nv_fmac_f32 v{f}, v136, v5\nv_fmac_f32 v{f+1}, v137, v5")
    a("s_waitcnt lgkmcnt(0)")
    a("s_setprio 3")
    for r in range(0, 16, 2): a(f"v_pk_add_f32 v[{160+r}:{161+r}], v[{160+r}:{161+r}], v[{176+r}:{177+r}]")
    for I in range(4):
        a(f"v_cvt_pk_bf16_f32 v{192+2*I}, v{160+4*I}, v{161+4*I}\nv_cvt_pk_bf16_f32 v{193+2*I}, v{162+4*I}, v{163+4*I}")
        a(f"buffer_store_dwordx2 v[{192+2*I}:{193+2*I}], v12, s[48:51], s14 offen offset:{512*I} sc1")
    a(f"v_mov_b32 v3, v13\nv_add_u32 v11, s31, v13\ns_waitcnt vmcnt(0)\ns_barrier")
    flag(a, 0, "l")
    a(f"s_setprio {OPT['pb3']}\nv_mov_b32 v13, v3")
    stamp(a, 8)
    if OPT.get("now"): a("s_endpgm")
    a(f"s_mul_i32 s31, s3, {RS}")
    for st in range(WR+2, NS):
        for t in wdma(st): a(t)

NS = KB // 4; WR = 13; HD = 9; ATL = 73728; AC = 96; RS = 2048*(NS-WR-2)
WREG = [24, 32, 40, 48, 56, 224, 232, 240, 248, 64, 72, 80, 88]
HREG = [160 + 8*i for i in range(8)] + [16]
LOFF = {WR: 0, WR+1: 2048}
for _s in range(WR+2, NS): LOFF[_s] = 16384 + 2048*(_s-WR-2)
def adv(r): return f"\ns_add_u32 s{r}, s{r}, 1024\ns_cmp_eq_u32 s{r}, {NS*1024}\ns_cselect_b32 s{r}, 0, s{r}"
def g2_addr(a):
    a(f"""
    s_lshl_b32 s28, s9, 2
    s_lshr_b32 s29, s8, 3
    s_add_u32 s28, s28, s29
    s_lshl_b32 s10, s30, 1
    s_add_u32 s10, s10, s5
    s_lshl_b32 s11, s28, 1
    s_add_u32 s11, s11, s6
    s_mul_i32 s29, s3, {NS*1024}
    s_mul_i32 s24, s10, {KB*1024}
    s_xor_b32 s25, s10, 1
    s_mul_i32 s25, s25, {KB*1024}
    s_mul_i32 s26, s11, {KB*1024}
    s_xor_b32 s27, s11, 1
    s_mul_i32 s27, s27, {KB*1024}
    s_add_u32 s26, s26, s29
    s_add_u32 s27, s27, s29
    s_add_u32 s29, s29, {WDF}
    s_add_u32 s24, s24, s29
    s_add_u32 s25, s25, s29
    """)

def gemm2(a):
    a(f"""
    s_lshl_b32 s44, s11, 3
    s_add_u32 s44, s44, {FG}
    v_mov_b32 v4, s44
    s_lshl_b32 s44, s30, 8
    s_add_u32 s44, s44, {FL}
    v_lshl_add_u32 v9, v2, 3, s44
    v_cmp_gt_u32 vcc, 32, v2
    v_cndmask_b32 v9, v4, v9, vcc
    """)
    srd(a, 40, 20, 2048*1024)
    a(f"""
    s_lshl_b32 s32, s10, 17
    s_lshl_b32 s33, s11, 6
    s_add_u32 s32, s32, s33
    s_add_u32 s32, s32, {AT}
    s_add_u32 s33, s32, 65536
    v_lshrrev_b32 v4, 2, v2
    v_lshlrev_b32 v4, 12, v4
    v_and_b32 v5, 3, v2
    v_lshl_add_u32 v4, v5, 4, v4
    v_and_b32 v6, 31, v2
    v_lshlrev_b32 v7, 2, v6
    s_lshl_b32 s34, s11, 7
    s_add_u32 s34, s34, {G_OFF}
    s_lshl_b32 s35, s3, 11
    s_add_u32 s35, s35, {ATL}
    v_lshrrev_b32 v14, 5, v2
    v_bfe_u32 v15, v2, 2, 2
    v_lshl_add_u32 v15, v14, 2, v15
    v_lshlrev_b32 v15, 6, v15
    v_bfe_u32 v1, v2, 4, 1
    v_lshl_add_u32 v15, v1, 5, v15
    v_lshl_add_u32 v15, v5, 3, v15
    v_add_u32 v15, s35, v15
    v_lshlrev_b32 v6, 10, v6
    v_lshl_add_u32 v6, v14, 4, v6
    s_lshl_b32 s36, s11, 15
    s_lshl_b32 s37, s10, 6
    s_add_u32 s36, s36, s37
    s_lshr_b32 s44, s28, 1
    s_lshl_b32 s44, s44, 7
    s_add_u32 s44, s44, {FH}
    v_lshl_add_u32 v5, v2, 3, s44
    v_add_u32 v12, s31, v3
    """)
    stamp(a, 9)
    a("s_setprio 0")
    a("s_cmp_lg_u32 s3, 0\ns_cbranch_scc1 Lg2_w")
    a(f"""
    s_cmp_ge_u32 s2, 240
    s_cbranch_scc1 Lsp_ok
    s_lshl_b32 s44, s2, 7
    s_add_u32 s44, s44, {FWF}
    s_mov_b32 s62, {OPT['sp2']}
Lsp:
    s_load_dword s45, s[48:49], s44 glc
    s_waitcnt lgkmcnt(0)
    s_cmp_eq_u32 s45, s60
    s_cbranch_scc1 Lsp_ok
    s_sleep 2
    s_sub_u32 s62, s62, 1
    s_cbranch_scc0 Lsp
Lsp_ok:
    """)
    poll(a, 0, 5, "h", 0x7fff, OPT["sl"])
    a("Lg2_w:\ns_barrier")
    a("s_setprio 3")
    stamp(a, 10)
    def loads(st):
        L = []; b = HREG[st % HD]
        for i in range(2):
            L.append(f"s_add_u32 s15, s{26+i}, s55\nbuffer_load_dwordx4 v[{b+4*i}:{b+4*i+3}], v3, s[48:51], s15 offen")
        L[-1] += adv(55)
        return L
    for st in range(HD):
        for t in loads(st): a(t)
    a("buffer_load_dwordx2 v[0:1], v9, s[48:51], 0 offen sc1")
    for st in range(NS):
        b = HREG[st % HD]; w = WREG[st % WR]
        a(f"s_waitcnt vmcnt({2*(min(st+HD, NS)-st-1) + (1 if st < HD else 3 if HD < st < 2*HD else 0)})" + (" lgkmcnt(0)" if st == WR else ""))
        for i in range(2):
            for j in range(2):
                c = AC + 16*(2*i+j)
                a(f"v_mfma_f32_32x32x16_bf16 v[{c}:{c+15}], v[{w+4*i}:{w+4*i+3}], v[{b+4*j}:{b+3+4*j}], " + ("0" if st == 0 else f"v[{c}:{c+15}]"))
        if st == HD:
            check(a, 0, 9, "l")
            a(f"""
            s_mov_b32 m0, s35
            buffer_load_dwordx4 v4, s[48:51], s32 offen lds
            s_add_u32 m0, s35, 1024
            buffer_load_dwordx4 v4, s[48:51], s33 offen lds
            buffer_load_dword v8, v7, s[48:51], s34 offen sc1
            """)
        if st + HD < NS:
            for t in loads(st + HD): a(t)
        if st + WR < NS:
            for i in range(2): a(f"ds_read_b128 v[{w+4*i}:{w+4*i+3}], v{11 if st < 2 else 12} offset:{LOFF[st+WR]+1024*i}")
    stamp(a, 11)
    a("v_sub_f32 v9, 1.0, v8\nv_cvt_pk_bf16_f32 v9, v9, v9\nv_lshlrev_b32 v9, 16, v9")
    for x in range(1, 4):
        a(f"s_xor_b32 s44, s3, {x}\ns_mul_i32 s44, s44, {RS}\ns_add_u32 s44, s44, {16384+(x-1)*4096}\nv_add_u32 v{x if x < 3 else 4}, s44, v3")
    for x in range(1, 4):
        for qd in range(4): a(f"ds_write_b128 v12, v[{AC+16*x+4*qd}:{AC+3+16*x+4*qd}] offset:{16384+(x-1)*4096+1024*qd}")
    for qd in range(4): a(f"ds_read_b64_tr_b16 v[{80+2*qd}:{81+2*qd}], v15 offset:{512*qd}")
    a("s_waitcnt lgkmcnt(0)\ns_barrier")
    for x in range(3):
        for qd in range(4): a(f"ds_read_b128 v[{160+16*x+4*qd}:{163+16*x+4*qd}], v{x+1 if x < 2 else 4} offset:{1024*qd}")
    for p in range(8):
        a(f"v_lshlrev_b32 v{24+2*p}, 16, v{80+p}\nv_and_b32 v{25+2*p}, s54, v{80+p}\nv_pk_mul_f32 v[{24+2*p}:{25+2*p}], v[{24+2*p}:{25+2*p}], v[8:9] op_sel_hi:[1,0]")
    for x in range(3):
        a(f"s_waitcnt lgkmcnt({8-4*x})")
        for r in range(0, 16, 2): a(f"v_pk_add_f32 v[{AC+r}:{AC+1+r}], v[{AC+r}:{AC+1+r}], v[{160+16*x+r}:{161+16*x+r}]")
    for p in range(8):
        a(f"v_pk_fma_f32 v[{24+2*p}:{25+2*p}], v[{AC+2*p}:{AC+1+2*p}], v[8:9], v[{24+2*p}:{25+2*p}] op_sel:[0,1,0] op_sel_hi:[1,1,1]")
    for p in range(8): a(f"v_cvt_pk_bf16_f32 v{88+p}, v{24+2*p}, v{25+2*p}")
    for pr in range(2):
        b = 88 + 4*pr
        a(f"v_permlane32_swap_b32 v{b}, v{b+2}\nv_permlane32_swap_b32 v{b+1}, v{b+3}")
        a(f"buffer_store_dwordx4 v[{b}:{b+3}], v6, s[40:43], s36 offen offset:{32*pr}" + ["", " sc1", " sc0 sc1", " nt"][OPT["ost"]])
    endp(a, 0, 48, 12)

def main(path):
    ref = open("gated_mix__ssm_conv_s4__geglu_ffn__prompt.s.ref").read().split("\n")
    hdr = [l for l in ref if l.startswith(";") and "@launch" not in l and "Override" not in l and "grid=ceil" not in l]
    L = ["; @launch kernel=k1_kernel grid=(512,1,1) block=(256,1,1) lds=81920"]
    a = Asm()
    head(a, "k1_kernel")
    a("s_cmp_ge_u32 s2, 256\ns_cbranch_scc1 Lk1_b")
    roleb(a)
    a("Lk1_b:\ns_cmp_ge_u32 s2, 496\ns_cbranch_scc1 Lk1_x")
    gemm1(a)
    a("Lk1_x:\ns_cmp_ge_u32 s2, 512\ns_cbranch_scc1 Lk1_y")
    rolec(a)
    a("Lk1_y:\ns_endpgm")
    out = "\n".join(hdr + L) + '\n.amdgcn_target "amdgcn-amd-amdhsa--gfx950"\n.text\n' + a.text()
    out += '.section .rodata,"a"\n' + kd("k1_kernel")
    open(path, "w").write(out)

if __name__ == "__main__":
    for kv in sys.argv[2:]:
        k, v = kv.split("="); OPT[k] = int(v)
    main(sys.argv[1])
```
